```python
import torch

def _softmax(x, axis=-1):
    return torch.softmax(x, dim=axis)
def _gelu(x):
    return torch.nn.functional.gelu(x, approximate="tanh")
def _silu(x):
    return torch.nn.functional.silu(x)
def _sigmoid(x):
    return torch.sigmoid(x)
def _layernorm(x, axis=-1, eps=1e-5):
    m = x.mean(dim=axis, keepdim=True)
    v = x.var(dim=axis, keepdim=True, unbiased=False)
    return (x - m) / torch.sqrt(v + eps)
def _scatter_add(tgt, idx, src, axis=0):
    return tgt.clone().index_add_(axis, idx, src)
def _segment_sum(src, seg, n):
    out = torch.zeros((n,) + src.shape[1:], dtype=src.dtype)
    return out.index_add_(0, seg, src)
def _pad(x, pw):
    flat = tuple(v for pair in reversed(pw) for v in pair)
    return torch.nn.functional.pad(x, flat)

kernel_name = 'recurrent_scan__gqa_block_cached__geglu_ffn__decode'

def setup_inputs():

    _w = (lambda a: (lambda t: t.to(torch.bfloat16) if t.is_floating_point() else t)(torch.as_tensor(a)))
    def _A_setup():
        B, Sq, D = 1, 1, 576
        Hq, Hkv, Sk, Dh = 32, 16, 65536, 128
        assert Hq % Hkv == 0, (Hq, Hkv)
        return {
            "x": _w((lambda *s: torch.randn(*s, dtype=torch.bfloat16) * 0.05)(B, Sq, D)),
            "k_cache": _w((lambda *s: torch.randn(*s, dtype=torch.bfloat16) * 1.6)(B, Hkv, Sk, Dh)),
            "v_cache": _w((lambda *s: torch.randn(*s, dtype=torch.bfloat16) * 0.2)(B, Hkv, Sk, Dh)),
            "wq": _w((lambda *s: torch.randn(*s, dtype=torch.bfloat16) * 1.6)(D, Hq * Dh) * (D ** -0.5)),
            "wo": _w((lambda *s: torch.randn(*s, dtype=torch.bfloat16) * 0.2)(Hq * Dh, D) * ((Hq * Dh) ** -0.5)),
        }
    _A_in = _A_setup()

    def _B_setup():
        B, S, D, F = 1, 1, 576, 4608
        return {
            "x": _w((lambda *s: torch.randn(*s, dtype=torch.bfloat16) * 0.05)(B, S, D)),
            "w_gate": _w((lambda *s: torch.randn(*s, dtype=torch.bfloat16) * 0.1)(D, F)),
            "w_up": _w((lambda *s: torch.randn(*s, dtype=torch.bfloat16) * 0.1)(D, F)),
            "w_down": _w((lambda *s: torch.randn(*s, dtype=torch.bfloat16) * 0.1)(F, D)),
        }
    _B_in = _B_setup()

    return {
        "A_x": _A_in["x"],
        "A_k_cache": _A_in["k_cache"],
        "A_v_cache": _A_in["v_cache"],
        "A_wq": _A_in["wq"],
        "A_wo": _A_in["wo"],
        "B_x": _B_in["x"],
        "B_w_gate": _B_in["w_gate"],
        "B_w_up": _B_in["w_up"],
        "B_w_down": _B_in["w_down"],
    }

def reference(A_x, A_k_cache, A_v_cache, A_wq, A_wo, B_x, B_w_gate, B_w_up, B_w_down):
    def _A_ref(x, k_cache, v_cache, wq, wo):
        B, Sq, D = x.shape
        Hq, Dh = 32, 128
        Hkv = k_cache.shape[1]
        rep = Hq // Hkv
        q = (lambda x, *d: x.permute(*d))((x @ wq).reshape(B, Sq, Hq, Dh), 0, 2, 1, 3)
        k = (lambda x, n, axis: torch.repeat_interleave(x, n, dim=axis))(k_cache, rep, axis=1)
        v = (lambda x, n, axis: torch.repeat_interleave(x, n, dim=axis))(v_cache, rep, axis=1)
        scores = torch.einsum("bhqd,bhkd->bhqk", q, k) * (Dh ** -0.5)
        p = _softmax(scores, axis=-1)
        o = torch.einsum("bhqk,bhkd->bhqd", p, v)
        return (lambda x, *d: x.permute(*d))(o, 0, 2, 1, 3).reshape(B, Sq, Hq * Dh) @ wo

    def _B_ref(x, w_gate, w_up, w_down):
        return (_gelu(x @ w_gate) * (x @ w_up)) @ w_down

    x = A_x
    xn = _layernorm(x, axis=-1)
    s = _A_ref(xn, A_k_cache, A_v_cache, A_wq, A_wo)
    g = _silu(_B_ref(xn, B_w_gate, B_w_up, B_w_down))
    return x + s * g
```

```python
import sys, struct, math

NAME = 'recurrent_scan__gqa_block_cached__geglu_ffn__decode'

def f32(v):
    return hex(struct.unpack('<I', struct.pack('<f', v))[0])

LOG2E = f32(math.log2(math.e))
SCALE = f32(128 ** -0.5)

XN, QP, QB, HB, GV, TP, OB = 0, 1280, 5376, 5888, 6016, 6272, 10624
TPS = 1088
LDS_BYTES = 11264
W_OP, W_ML, W_SP, W_YP = 0, 0x40000, 0x50000, 0x80000
WS_BYTES = 0x100000
SENT = '-1'

class Cfg:
    G = 5
    kflags = 'nt'
    vflags = 'nt'
    wqflags = ''
    wflags = 'nt'
    aux_prio = 2
    spin_max = 1 << 22

def gen(cfg):
    L = []
    def A(s):
        L.append('    ' + s)
    def LBL(s):
        L.append(s + ':')
    def C(s):
        L.append('    ; ' + s)
    G = cfg.G
    hdr = open('cdna_kernels/%s.s.ref' % NAME).read().split('\n')
    for line in hdr:
        if line.startswith('; @launch'):
            break
        if line.startswith(';'):
            L.append(line)
    L.append(f'; @launch grid=(256,1,1) block=(512,1,1) lds={LDS_BYTES}')
    L.append('.amdgcn_target "amdgcn-amd-amdhsa--gfx950"')
    L.append('.text')
    L.append(f'.globl {NAME}_kernel')
    L.append('.p2align 8')
    L.append(f'.type {NAME}_kernel,@function')
    LBL(f'{NAME}_kernel')

    def srd(d, lo, nbytes):
        A(f's_mov_b32 s{d}, s{lo}')
        A(f's_and_b32 s{d+1}, s{lo+1}, 0xffff')
        A(f's_mov_b32 s{d+2}, {nbytes}')
        A(f's_mov_b32 s{d+3}, 0x20000')

    DPPM = 'row_mask:0xf bank_mask:0xf'
    def row_allreduce(op, v):
        for pat in ['quad_perm:[1,0,3,2]', 'quad_perm:[2,3,0,1]', 'row_half_mirror', 'row_mirror']:
            A('s_nop 1')
            A(f'{op}_dpp v{v}, v{v}, v{v} {pat} {DPPM}')
    def xrow_allreduce(op, v, t):
        for sw in ['v_permlane16_swap_b32', 'v_permlane32_swap_b32']:
            A(f'v_mov_b32 v{t}, v{v}')
            A('s_nop 1')
            A(f'{sw} v{v}, v{t}')
            A('s_nop 1')
            A(f'{op} v{v}, v{v}, v{t}')
    def round_bf16(v, t=None):
        A(f'v_cvt_pk_bf16_f32 v{v}, v{v}, v{v}')
        A(f'v_lshlrev_b32 v{v}, 16, v{v}')
    def sanitize(v):
        A(f'v_cmp_eq_u32 vcc, {SENT}, v{v}')
        A('s_nop 1')
        A(f'v_cndmask_b32 v{v}, v{v}, v{VNAN}, vcc')

    A('s_cmp_ge_u32 s2, 256')
    A('s_cbranch_scc1 L_end')
    A('s_load_dwordx16 s[16:31], s[0:1], 0')
    A('s_load_dwordx8 s[32:39], s[0:1], 64')
    A('v_lshrrev_b32 v1, 6, v0')
    A('v_and_b32 v0, 63, v0')
    A('v_readfirstlane_b32 s3, v1')
    A('s_and_b32 s4, s2, 15')
    A('s_lshr_b32 s5, s2, 4')
    MK = 2
    VG, VH, VNAN = 6, 7, 8
    A('v_and_b32 v9, 1, v0')
    A('v_lshlrev_b32 v9, 4, v9')
    A('v_mov_b32 v10, 0xffff')
    A('v_lshlrev_b32 v9, v9, v10')
    A('v_bfe_u32 v10, v0, 1, 2')
    for r in range(4):
        A(f'v_cmp_eq_u32 vcc, {r}, v10')
        A('s_nop 1')
        A(f'v_cndmask_b32 v{MK+r}, 0, v9, vcc')
    A(f'v_lshrrev_b32 v{VG}, 4, v0')
    A(f'v_bfe_u32 v{VH}, v0, 3, 1')
    A(f'v_mov_b32 v{VNAN}, 0x7fc00000')
    A(f'v_cmp_eq_u32 s[14:15], 1, v{VH}')
    A('s_mov_b32 s6, 0x01000100')
    A('s_mov_b32 s7, 0x03020302')
    A(f's_mov_b32 s8, {LOG2E}')
    A('s_waitcnt lgkmcnt(0)')
    srd(52, 38, WS_BYTES)
    srd(60, 16, 1152)
    srd(64, 36, 256)
    A('s_cmp_ge_u32 s3, 4')
    A('s_cbranch_scc1 L_aux')

    VKO, VVO = 9, 10
    QF = 12
    ACC = 28
    VM, VL = 32, 33
    S = 36
    T = 40
    P = 48
    BB = 52
    WO = 68
    RING = 100 - 4
    RING = 96
    BB = 48
    P = 40
    T = 44
    S = 36; P = 40; T = 44; T2 = 34
    BB = 48
    WO = 64
    RING = 96
    assert RING + 32*G <= 256
    srd(40, 18, 0x10000000)
    srd(44, 20, 0x10000000)
    srd(48, 24, 4096*1152)
    srd(56, 34, 1152)
    A('v_and_b32 v11, 3, v0')
    A('v_lshlrev_b32 v11, 10, v11')
    A(f'v_bfe_u32 v{VKO}, v0, 2, 2')
    A(f'v_lshl_add_u32 v11, v{VKO}, 8, v11')
    A(f'v_lshl_add_u32 v{VKO}, v{VG}, 4, v11')
    A(f'v_lshlrev_b32 v{VVO}, 4, v0')
    A('s_lshl_b32 s9, s4, 24')
    A('s_lshl_b32 s10, s5, 2')
    A('s_add_u32 s10, s10, s3')
    A('s_lshl_b32 s10, s10, 12')
    A('s_add_u32 s9, s9, s10')
    A('s_cmp_ge_u32 s5, 9')
    A('s_cbranch_scc1 L_att_nowo')
    A('v_and_b32 v11, 1, v0')
    A(f'v_lshl_add_u32 v11, v{VG}, 1, v11')
    A('v_mul_u32_u24 v11, 9216, v11')
    A(f'v_bfe_u32 v{T}, v0, 1, 3')
    A(f'v_lshl_add_u32 v11, v{T}, 4, v11')
    A('s_lshl_b32 s10, s4, 8')
    A('s_lshl_b32 s11, s3, 6')
    A('s_add_u32 s10, s10, s11')
    A('s_mul_i32 s10, s10, 1152')
    A('s_lshl_b32 s11, s5, 7')
    A('s_add_u32 s10, s10, s11')
    A('s_add_u32 s11, s10, 4608')
    for t in range(8):
        A(f'buffer_load_dwordx4 v[{WO+4*t}:{WO+4*t+3}], v11, s[48:51], s{10 if t < 4 else 11} offen offset:{(t%4)*1152} {cfg.wflags}')
    LBL('L_att_nowo')

    def kload(slot):
        for j in range(4):
            r = RING + slot*32 + j*4
            A(f'buffer_load_dwordx4 v[{r}:{r+3}], v{VKO}, s[40:43], s9 offen offset:{j*64} {cfg.kflags}')
    def vload(slot):
        for j in range(4):
            r = RING + slot*32 + 16 + j*4
            A(f'buffer_load_dwordx4 v[{r}:{r+3}], v{VVO}, s[44:47], s9 offen offset:{j*1024} {cfg.vflags}')
        A(f's_add_u32 s9, s9, {64*4096}')
    for g in range(G):
        kload(g); vload(g)
    for r in range(4):
        A(f'v_mov_b32 v{ACC+r}, 0')
    A(f'v_mov_b32 v{VM}, 0xff800000')
    A(f'v_mov_b32 v{VL}, 0')
    A('s_lshl_b32 s10, s3, 8')
    A(f'v_lshl_add_u32 v11, v0, 2, s10')
    A('s_barrier')
    for a in range(4):
        A(f'ds_read_b32 v{T+a}, v11 offset:{QP + a*1024}')
    A('v_lshrrev_b32 v11, 1, v11')
    A('s_waitcnt lgkmcnt(0)')
    A(f'v_add_f32 v{T}, v{T}, v{T+1}')
    A(f'v_add_f32 v{T+2}, v{T+2}, v{T+3}')
    A(f'v_add_f32 v{T}, v{T}, v{T+2}')
    A(f'v_cvt_pk_bf16_f32 v{T}, v{T}, v{T}')
    A(f'ds_write_b16 v11, v{T} offset:{QB}')
    A(f'v_lshlrev_b32 v11, 8, v{VH}')
    A(f'v_lshl_add_u32 v11, v{VG}, 4, v11')
    A('s_waitcnt lgkmcnt(0)')
    A('s_barrier')
    for j in range(4):
        A(f'ds_read_b128 v[{QF+4*j}:{QF+4*j+3}], v11 offset:{QB + j*64}')
    A('s_waitcnt lgkmcnt(0)')

    def group(slot, wk, wv, reload):
        kb = RING + slot*32
        vb = kb + 16
        A(f's_waitcnt vmcnt({wk})')
        for j in range(4):
            c = '0' if j == 0 else f'v[{S}:{S+3}]'
            A(f'v_mfma_f32_16x16x32_bf16 v[{S}:{S+3}], v[{kb+4*j}:{kb+4*j+3}], v[{QF+4*j}:{QF+4*j+3}], {c}')
        if reload:
            kload(slot)
            A('s_nop 4')
        else:
            A('s_nop 7')
        A('s_nop 0')
        A(f'v_cvt_pk_bf16_f32 v{T}, v{S}, v{S+1}')
        A(f'v_cvt_pk_bf16_f32 v{T+1}, v{S+2}, v{S+3}')
        A(f'v_lshlrev_b32 v{S}, 16, v{T}')
        A(f'v_and_b32 v{S+1}, 0xffff0000, v{T}')
        A(f'v_lshlrev_b32 v{S+2}, 16, v{T+1}')
        A(f'v_and_b32 v{S+3}, 0xffff0000, v{T+1}')
        for r in range(4):
            A(f'v_mul_f32 v{S+r}, {SCALE}, v{S+r}')
        A(f'v_cvt_pk_bf16_f32 v{T}, v{S}, v{S+1}')
        A(f'v_cvt_pk_bf16_f32 v{T+1}, v{S+2}, v{S+3}')
        A(f'v_lshlrev_b32 v{S}, 16, v{T}')
        A(f'v_and_b32 v{S+1}, 0xffff0000, v{T}')
        A(f'v_lshlrev_b32 v{S+2}, 16, v{T+1}')
        A(f'v_and_b32 v{S+3}, 0xffff0000, v{T+1}')
        A(f'v_max3_f32 v{T}, v{S}, v{S+1}, v{S+2}')
        A(f'v_max3_f32 v{T}, v{T}, v{S+3}, v{VM}')
        xrow_allreduce('v_max_f32', T, T+1)
        A(f'v_sub_f32 v{T+1}, v{VM}, v{T}')
        A(f'v_mul_f32 v{T+1}, s8, v{T+1}')
        A(f'v_exp_f32 v{T+1}, v{T+1}')
        A(f'v_mov_b32 v{VM}, v{T}')
        for r in range(4):
            A(f'v_sub_f32 v{P+r}, v{S+r}, v{T}')
        for r in range(4):
            A(f'v_mul_f32 v{P+r}, s8, v{P+r}')
        for r in range(4):
            A(f'v_exp_f32 v{P+r}, v{P+r}')
        for r in range(4):
            A(f'v_mul_f32 v{ACC+r}, v{T+1}, v{ACC+r}')
        A(f'v_add_f32 v{T+2}, v{P}, v{P+1}')
        A(f'v_add_f32 v{T+3}, v{P+2}, v{P+3}')
        A(f'v_add_f32 v{T+2}, v{T+2}, v{T+3}')
        A(f'v_fma_f32 v{VL}, v{VL}, v{T+1}, v{T+2}')
        for i in range(4):
            A(f'v_cvt_pk_bf16_f32 v{T2 + (i&1)}, v{P+i}, v{P+i}')
            for r in range(4):
                A(f'v_and_b32 v{BB+4*i+r}, v{MK+r}, v{T2 + (i&1)}')
        A(f's_waitcnt vmcnt({wv})')
        A('s_nop 0')
        for i in range(4):
            A(f'v_mfma_f32_16x16x32_bf16 v[{ACC}:{ACC+3}], v[{vb+4*i}:{vb+4*i+3}], v[{BB+4*i}:{BB+4*i+3}], v[{ACC}:{ACC+3}]')
        if reload:
            vload(slot)

    NT = 64
    full_iters = (NT - G)//G
    A(f's_mov_b32 s10, {full_iters}')
    LBL('L_loop')
    for g in range(G):
        group(g, 8*G-4, 8*G-4, True)
    A('s_sub_u32 s10, s10, 1')
    A('s_cmp_lg_u32 s10, 0')
    A('s_cbranch_scc1 L_loop')
    done = full_iters*G
    outstanding = 8*G
    for i in range(done, NT):
        slot = i % G
        rel = (i + G) < NT
        wk = outstanding - 4
        outstanding -= 4
        if rel: outstanding += 4
        wv = outstanding - 4
        outstanding -= 4
        if rel: outstanding += 4
        group(slot, wk, wv, rel)
    assert outstanding == 0

    C('tail: WG-level combine')
    xrow_allreduce('v_add_f32', VL, T)
    A(f's_mul_i32 s10, s3, {TPS}')
    A('v_and_b32 v11, 7, v0')
    A(f'v_lshl_add_u32 v11, v{VG}, 5, v11')
    A(f'v_lshl_add_u32 v11, v{VH}, 7, v11')
    A('v_lshl_add_u32 v11, v11, 2, s10')
    A(f'v_lshl_add_u32 v{T}, v{VH}, 3, s10')
    A('s_nop 4')
    for r in range(4):
        A(f'ds_write_b32 v11, v{ACC+r} offset:{TP + r*32}')
    A(f'ds_write_b64 v{T}, v[{VM}:{VM+1}] offset:{TP + 1024}')
    A('s_lshl_b32 s10, s3, 8')
    A('v_lshl_add_u32 v11, v0, 2, s10')
    A('s_lshr_b32 s11, s3, 1')
    A('s_lshl_b32 s12, s11, 3')
    A(f'v_mov_b32 v{T}, s12')
    A('s_waitcnt lgkmcnt(0)')
    A('s_barrier')
    RA = 100
    for w in range(4):
        A(f'ds_read_b32 v{RA+w}, v11 offset:{TP + w*TPS}')
        A(f'ds_read_b64 v[{RA+4+2*w}:{RA+5+2*w}], v{T} offset:{TP + w*TPS + 1024}')
    A('s_waitcnt lgkmcnt(0)')
    M_, Lr, O_ = RA+12, RA+13, RA+14
    A(f'v_max3_f32 v{M_}, v{RA+4}, v{RA+6}, v{RA+8}')
    A(f'v_max_f32 v{M_}, v{M_}, v{RA+10}')
    for w in range(4):
        A(f'v_sub_f32 v{RA+4+2*w}, v{RA+4+2*w}, v{M_}')
        A(f'v_mul_f32 v{RA+4+2*w}, s8, v{RA+4+2*w}')
        A(f'v_exp_f32 v{RA+4+2*w}, v{RA+4+2*w}')
    A('s_nop 0')
    A(f'v_mul_f32 v{O_}, v{RA}, v{RA+4}')
    A(f'v_mul_f32 v{Lr}, v{RA+5}, v{RA+4}')
    for w in range(1, 4):
        A(f'v_fmac_f32 v{O_}, v{RA+w}, v{RA+4+2*w}')
        A(f'v_fmac_f32 v{Lr}, v{RA+5+2*w}, v{RA+4+2*w}')
    sanitize(O_); sanitize(M_); sanitize(Lr)
    A('s_lshl_b32 s12, s4, 4')
    A('s_add_u32 s12, s12, s5')
    A('s_lshl_b32 s12, s12, 10')
    A(f'buffer_store_dword v{O_}, v11, s[52:55], s12 offen sc1')
    A('s_lshl_b32 s13, s4, 1')
    A('s_add_u32 s13, s13, s11')
    A('s_lshl_b32 s13, s13, 7')
    A(f's_add_u32 s13, s13, {W_ML}')
    A('s_and_b32 s12, s3, 1')
    A('s_cmp_lg_u32 s12, 0')
    A('s_cbranch_scc1 L_noml')
    A('s_lshl_b32 s12, s5, 3')
    A(f'v_mov_b32 v{T}, s12')
    A('s_mov_b64 exec, 1')
    A(f'buffer_store_dwordx2 v[{M_}:{M_+1}], v{T}, s[52:55], s13 offen sc1')
    A('s_mov_b64 exec, -1')
    LBL('L_noml')
    A('s_cmp_lt_u32 s5, 9')
    A('s_cbranch_scc1 L_wo')
    A('s_cmp_lg_u32 s5, 9')
    A('s_cbranch_scc1 L_end')
    A('s_cmp_ge_u32 s4, 9')
    A('s_cbranch_scc1 L_end')
    A('s_cmp_lg_u32 s3, 0')
    A('s_cbranch_scc1 L_end')
    A('s_branch L_final')

    LBL('L_wo')
    OPR = 104
    MLR = 120
    A('s_lshl_b32 s68, s4, 14')
    A('s_add_u32 s69, s68, 4096')
    A('s_add_u32 s70, s68, 8192')
    A('s_add_u32 s71, s68, 12288')
    A('v_and_b32 v12, 15, v0')
    A('v_lshlrev_b32 v12, 3, v12')
    A(f's_mov_b32 s12, {cfg.spin_max}')
    LBL('L_poll1')
    for p in range(16):
        A(f'buffer_load_dword v{OPR+p}, v11, s[52:55], s{68 + p//4} offen offset:{(p%4)*1024} sc1')
    A(f'buffer_load_dwordx2 v[{MLR}:{MLR+1}], v12, s[52:55], s13 offen sc1')
    A('s_waitcnt vmcnt(0)')
    A(f'v_max3_u32 v{T}, v{OPR}, v{OPR+1}, v{OPR+2}')
    for p in range(3, 17, 2):
        A(f'v_max3_u32 v{T}, v{T}, v{OPR+p}, v{OPR+p+1}')
    A(f'v_max_u32 v{T}, v{T}, v{MLR+1}')
    A(f'v_cmp_eq_u32 vcc, {SENT}, v{T}')
    A('s_sub_u32 s12, s12, 1')
    A('s_cmp_eq_u32 s12, 0')
    A('s_cbranch_scc1 L_poll1_done')
    A('s_cbranch_vccnz L_poll1')
    LBL('L_poll1_done')
    A(f'v_mov_b32 v{T}, v{MLR}')
    row_allreduce('v_max_f32', T)
    A(f'v_sub_f32 v{T}, v{MLR}, v{T}')
    A(f'v_mul_f32 v{T}, s8, v{T}')
    A(f'v_exp_f32 v{T}, v{T}')
    A('s_nop 0')
    A(f'v_mul_f32 v{T+1}, v{T}, v{MLR+1}')
    row_allreduce('v_add_f32', T+1)
    A(f'v_rcp_f32 v{T+1}, v{T+1}')
    for p in range(16):
        A(f'v_readlane_b32 s{72+p}, v{T}, {p}')
    A('s_nop 1')
    A(f'v_mul_f32 v{T+2}, s72, v{OPR}')
    for p in range(1, 16):
        A(f'v_fmac_f32 v{T+2}, s{72+p}, v{OPR+p}')
    A(f'v_mul_f32 v{T+2}, v{T+2}, v{T+1}')
    A(f'v_cvt_pk_bf16_f32 v{T+2}, v{T+2}, v{T+2}')
    A('s_lshl_b32 s12, s3, 7')
    A('v_lshl_add_u32 v12, v0, 1, s12')
    A(f'ds_write_b16 v12, v{T+2} offset:{OB}')
    A('v_lshrrev_b32 v12, 3, v0')
    A('v_lshl_add_u32 v12, v12, 4, s12')
    A('s_waitcnt lgkmcnt(0)')
    A(f'ds_read_b128 v[{S}:{S+3}], v12 offset:{OB}')
    A('s_waitcnt lgkmcnt(0)')
    for t in range(8):
        b = BB + 4*(t % 4)
        A(f'v_perm_b32 v{T}, v{S + t//2}, v{S + t//2}, s{6 + (t & 1)}')
        for r in range(4):
            A(f'v_and_b32 v{b+r}, v{MK+r}, v{T}')
        A('s_nop 1')
        c = '0' if t == 0 else f'v[{ACC}:{ACC+3}]'
        A(f'v_mfma_f32_16x16x32_bf16 v[{ACC}:{ACC+3}], v[{WO+4*t}:{WO+4*t+3}], v[{b}:{b+3}], {c}')
    def xy_combine(acc, dst, t):
        A(f'v_cndmask_b32 v{dst}, v{acc}, v{acc+3}, s[14:15]')
        A(f'v_cndmask_b32 v{t}, v{acc+2}, v{acc+1}, s[14:15]')
        A('s_nop 1')
        A(f'v_add_f32_dpp v{dst}, v{t}, v{dst} row_ror:8 {DPPM}')
    A('s_nop 7')
    A('s_nop 0')
    xy_combine(ACC, T, T+1)
    sanitize(T)
    A('s_lshl_b32 s12, s5, 14')
    A('s_lshl_b32 s13, s4, 2')
    A('s_add_u32 s13, s13, s3')
    A('s_lshl_b32 s13, s13, 8')
    A('s_add_u32 s12, s12, s13')
    A(f's_add_u32 s12, s12, {W_SP}')
    A('v_lshlrev_b32 v12, 2, v0')
    A(f'buffer_store_dword v{T}, v12, s[52:55], s12 offen sc1')
    A('s_endpgm')

    LBL('L_final')
    FR = 100
    A('s_lshl_b32 s68, s4, 14')
    A(f's_add_u32 s68, s68, {W_SP}')
    A('s_add_u32 s69, s68, 4096')
    A('s_add_u32 s70, s68, 8192')
    A('s_add_u32 s71, s68, 12288')
    A('v_and_b32 v12, 15, v0')
    A('v_lshlrev_b32 v13, 3, v12')
    A('s_lshl_b32 s13, s4, 7')
    A('buffer_load_dwordx2 v[14:15], v13, s[60:63], s13 offen')
    A('v_lshlrev_b32 v12, 4, v12')
    A(f'ds_read_b128 v[16:19], v12 offset:{GV}')
    A(f's_mov_b32 s12, {cfg.spin_max}')
    LBL('L_poll2')
    for k in range(16):
        A(f'buffer_load_dwordx4 v[{FR+4*k}:{FR+4*k+3}], v{VVO}, s[52:55], s{68 + k//4} offen offset:{(k%4)*1024} sc1')
    A('s_waitcnt vmcnt(0) lgkmcnt(0)')
    A(f'v_max_u32 v{T}, v{FR}, v{FR+1}')
    for k in range(2, 64, 2):
        A(f'v_max3_u32 v{T}, v{T}, v{FR+k}, v{FR+k+1}')
    A(f'v_cmp_eq_u32 vcc, {SENT}, v{T}')
    A('s_sub_u32 s12, s12, 1')
    A('s_cmp_eq_u32 s12, 0')
    A('s_cbranch_scc1 L_poll2_done')
    A('s_cbranch_vccnz L_poll2')
    LBL('L_poll2_done')
    for k in range(1, 16):
        for r in range(4):
            A(f'v_add_f32 v{FR+r}, v{FR+r}, v{FR+4*k+r}')
    for r in range(4):
        xrow_allreduce('v_add_f32', FR+r, T)
    for r in range(4):
        round_bf16(FR+r)
        A(f'v_mul_f32 v{FR+r}, v{FR+r}, v{16+r}')
        round_bf16(FR+r)
    A('v_lshlrev_b32 v20, 16, v14')
    A('v_and_b32 v21, 0xffff0000, v14')
    A('v_lshlrev_b32 v22, 16, v15')
    A('v_and_b32 v23, 0xffff0000, v15')
    for r in range(4):
        A(f'v_add_f32 v{20+r}, v{20+r}, v{FR+r}')
    A('v_cvt_pk_bf16_f32 v20, v20, v21')
    A('v_cvt_pk_bf16_f32 v21, v22, v23')
    A('s_mov_b64 exec, 0xffff')
    A('buffer_store_dwordx2 v[20:21], v13, s[56:59], s13 offen')
    A('s_endpgm')

    LBL('L_aux')
    A(f's_setprio {cfg.aux_prio}')
    A('s_sub_u32 s3, s3, 4')
    srd(40, 22, 576*8192)
    XR = 12
    A('v_lshlrev_b32 v9, 4, v0')
    A('v_lshlrev_b32 v10, 2, v0')
    A(f'buffer_load_dwordx4 v[{XR}:{XR+3}], v9, s[60:63], 0 offen')
    A(f'buffer_load_dword v{XR+4}, v10, s[60:63], 0 offen offset:1024')
    A('v_and_b32 v11, 15, v0')
    A('v_lshlrev_b32 v11, 4, v11')
    A(f's_mov_b32 s10, {36*8192}')
    A(f'v_mul_lo_u32 v17, v{VG}, s10')
    A('v_add_u32 v11, v11, v17')
    A(f's_mul_i32 s9, s3, {144*8192}')
    A('s_lshl_b32 s10, s4, 9')
    A('s_add_u32 s9, s9, s10')
    QR = 64
    NR = 24
    def wqload(t):
        for b in range(2):
            r = QR + (t % NR)*8 + b*4
            A(f'buffer_load_dwordx4 v[{r}:{r+3}], v11, s[40:43], s9 offen offset:{b*256} {cfg.wqflags}')
        A('s_add_u32 s9, s9, 8192')
    for t in range(NR):
        wqload(t)
    C('layernorm')
    XF = 18
    A(f's_waitcnt vmcnt({2*NR})')
    for k in range(5):
        A(f'v_lshlrev_b32 v{XF+2*k}, 16, v{XR+k}')
        A(f'v_and_b32 v{XF+2*k+1}, 0xffff0000, v{XR+k}')
    SU, TT = 28, 29
    A(f'v_add_f32 v{SU}, v{XF}, v{XF+1}')
    for k in range(2, 10):
        A(f'v_add_f32 v{SU}, v{SU}, v{XF+k}')
    row_allreduce('v_add_f32', SU)
    xrow_allreduce('v_add_f32', SU, TT)
    A(f'v_mul_f32 v{SU}, {f32(1.0/576)}, v{SU}')
    VV = 30
    A(f'v_cmp_gt_u32 vcc, 32, v0')
    A(f'v_sub_f32 v{TT}, v{XF}, v{SU}')
    A(f'v_mul_f32 v{VV}, v{TT}, v{TT}')
    for k in range(1, 8):
        A(f'v_sub_f32 v{TT}, v{XF+k}, v{SU}')
        A(f'v_fmac_f32 v{VV}, v{TT}, v{TT}')
    for k in range(8, 10):
        A(f'v_sub_f32 v{TT}, v{XF+k}, v{SU}')
        A(f'v_cndmask_b32 v{TT}, 0, v{TT}, vcc')
        A(f'v_fmac_f32 v{VV}, v{TT}, v{TT}')
    row_allreduce('v_add_f32', VV)
    xrow_allreduce('v_add_f32', VV, TT)
    A(f'v_mul_f32 v{VV}, {f32(1.0/576)}, v{VV}')
    round_bf16(VV)
    round_bf16(SU)
    A(f'v_add_f32 v{VV}, {f32(1e-5)}, v{VV}')
    round_bf16(VV)
    A(f'v_sqrt_f32 v{VV}, v{VV}')
    A('s_nop 0')
    round_bf16(VV)
    A(f'v_rcp_f32 v{TT}, v{VV}')
    for k in range(10):
        A(f'v_sub_f32 v{XF+k}, v{XF+k}, v{SU}')
        round_bf16(XF+k)
    for k in range(10):
        A(f'v_mul_f32 v31, v{XF+k}, v{TT}')
        A(f'v_fma_f32 v32, -v31, v{VV}, v{XF+k}')
        A(f'v_fma_f32 v{XF+k}, v32, v{TT}, v31')
    for k in range(5):
        A(f'v_cvt_pk_bf16_f32 v{XR+k}, v{XF+2*k}, v{XF+2*k+1}')
    A(f'ds_write_b128 v9, v[{XR}:{XR+3}] offset:{XN}')
    A(f'ds_write_b32 v10, v{XR+4} offset:{XN+1024}')
    XQ = 18
    A('s_mul_i32 s10, s3, 288')
    A(f'v_mul_u32_u24 v17, 72, v{VG}')
    A('v_add_u32 v17, s10, v17')
    A('s_waitcnt lgkmcnt(0)')
    for k in range(9):
        A(f'ds_read_b64 v[{XQ+2*k}:{XQ+2*k+1}], v17 offset:{XN + 8*k}')
    A('s_waitcnt lgkmcnt(0)')
    QA = 36
    AB = 44
    AT = 52
    out = 2*NR
    for t in range(36):
        b = AB + 4*(t & 1)
        A(f'v_perm_b32 v{AT}, v{XQ + t//2}, v{XQ + t//2}, s{6 + (t & 1)}')
        for r in range(4):
            A(f'v_and_b32 v{b+r}, v{MK+r}, v{AT}')
        A(f's_waitcnt vmcnt({out-2})')
        out -= 2
        A('s_nop 0')
        for bb in range(2):
            r = QR + (t % NR)*8 + bb*4
            c = '0' if t == 0 else f'v[{QA+4*bb}:{QA+4*bb+3}]'
            A(f'v_mfma_f32_16x16x32_bf16 v[{QA+4*bb}:{QA+4*bb+3}], v[{r}:{r+3}], v[{b}:{b+3}], {c}')
        if t + NR < 36:
            wqload(t + NR)
            out += 2
    assert out == 0
    A('s_lshl_b32 s10, s3, 10')
    A('v_and_b32 v17, 7, v0')
    A(f'v_lshl_add_u32 v17, v{VG}, 5, v17')
    A('v_lshl_add_u32 v17, v17, 2, s10')
    A('s_nop 5')
    for bb in range(2):
        for r in range(4):
            A(f'ds_write_b32 v17, v{QA+4*bb+r} offset:{QP + bb*512 + r*32}')
    A('s_waitcnt lgkmcnt(0)')
    A('s_barrier')
    A('s_barrier')
    A('s_cmp_eq_u32 s3, 3')
    A('s_cbranch_scc1 L_init')
    A('s_cmp_eq_u32 s3, 1')
    A('s_cbranch_scc1 L_gwave')
    A('s_cmp_lg_u32 s3, 0')
    A('s_cbranch_scc1 L_end')
    A('s_cmp_ge_u32 s2, 72')
    A('s_cbranch_scc1 L_end')

    C('FFN unit: columns 64u..64u+63')
    srd(40, 28, 576*9216)
    srd(44, 30, 576*9216)
    srd(48, 32, 4608*1152)
    FX = 12
    FA = 48
    FB = 56
    FT = 9
    FRG = 64
    FNR = 24
    A('v_and_b32 v9, 1, v0')
    A(f'v_lshl_add_u32 v9, v{VG}, 1, v9')
    A(f's_mov_b32 s10, {72*9216}')
    A('v_mul_lo_u32 v11, v9, s10')
    A('v_bfe_u32 v10, v0, 1, 3')
    A('v_lshl_add_u32 v11, v10, 4, v11')
    A('s_lshl_b32 s9, s2, 7')
    def gload(t):
        for b in range(2):
            r = FRG + (t % FNR)*8 + b*4
            A(f'buffer_load_dwordx4 v[{r}:{r+3}], v11, s[{40+4*b}:{43+4*b}], s9 offen {cfg.wflags}')
        A('s_add_u32 s9, s9, 9216')
    for t in range(FNR):
        gload(t)
    A('v_lshrrev_b32 v10, 3, v0')
    A('v_mul_u32_u24 v10, 144, v10')
    for k in range(9):
        A(f'ds_read_b128 v[{FX+4*k}:{FX+4*k+3}], v10 offset:{XN + 16*k}')
    A('s_waitcnt lgkmcnt(0)')
    out = 2*FNR
    for t in range(72):
        b = FB + 4*(t & 1)
        A(f'v_perm_b32 v{FT}, v{FX + t//2}, v{FX + t//2}, s{6 + (t & 1)}')
        for r in range(4):
            A(f'v_and_b32 v{b+r}, v{MK+r}, v{FT}')
        A(f's_waitcnt vmcnt({out-2})')
        out -= 2
        A('s_nop 0')
        for bb in range(2):
            r = FRG + (t % FNR)*8 + bb*4
            c = '0' if t == 0 else f'v[{FA+4*bb}:{FA+4*bb+3}]'
            A(f'v_mfma_f32_16x16x32_bf16 v[{FA+4*bb}:{FA+4*bb+3}], v[{r}:{r+3}], v[{b}:{b+3}], {c}')
        if t + FNR < 72:
            gload(t + FNR)
            out += 2
    assert out == 0
    A('v_and_b32 v9, 1, v0')
    A(f'v_lshl_add_u32 v9, v{VG}, 1, v9')
    A('v_mul_u32_u24 v11, 9216, v9')
    A('v_bfe_u32 v10, v0, 1, 3')
    A('v_lshl_add_u32 v11, v10, 4, v11')
    A(f's_mul_i32 s9, s2, {64*1152}')
    DR = 104
    def dload(t):
        for cb in range(9):
            r = DR + ((t % 4)*9 + cb)*4
            A(f'buffer_load_dwordx4 v[{r}:{r+3}], v11, s[48:51], s9 offen offset:{cb*128} {cfg.wflags}')
        A('s_add_u32 s9, s9, 1152')
    for t in range(4):
        dload(t)
    GA, UP = 12, 13
    xy_combine(FA, GA, 14)
    xy_combine(FA+4, UP, 14)
    round_bf16(GA); round_bf16(UP)
    A(f'v_mul_f32 v14, v{GA}, v{GA}')
    A(f'v_mul_f32 v14, {f32(0.044715)}, v14')
    A(f'v_fma_f32 v14, v14, v{GA}, v{GA}')
    A(f'v_mul_f32 v14, {f32(-2.0*math.sqrt(2/math.pi)*math.log2(math.e))}, v14')
    A('v_exp_f32 v14, v14')
    A('s_nop 0')
    A('v_add_f32 v14, 1.0, v14')
    A('v_rcp_f32 v14, v14')
    A('s_nop 0')
    A(f'v_mul_f32 v{GA}, v{GA}, v14')
    round_bf16(GA)
    A(f'v_mul_f32 v{GA}, v{GA}, v{UP}')
    A(f'v_cvt_pk_bf16_f32 v{GA}, v{GA}, v{GA}')
    A('v_lshlrev_b32 v14, 1, v0')
    A(f'ds_write_b16 v14, v{GA} offset:{HB}')
    A('v_lshrrev_b32 v14, 3, v0')
    A('v_lshlrev_b32 v14, 4, v14')
    A('s_waitcnt lgkmcnt(0)')
    A(f'ds_read_b128 v[16:19], v14 offset:{HB}')
    A('s_waitcnt lgkmcnt(0)')
    DA = 64
    out = 36
    for t in range(8):
        b = FB + 4*(t & 1)
        A(f'v_perm_b32 v{FT}, v{16 + t//2}, v{16 + t//2}, s{6 + (t & 1)}')
        for r in range(4):
            A(f'v_and_b32 v{b+r}, v{MK+r}, v{FT}')
        A(f's_waitcnt vmcnt({out-9})')
        out -= 9
        A('s_nop 0')
        for cb in range(9):
            r = DR + ((t % 4)*9 + cb)*4
            c = '0' if t == 0 else f'v[{DA+4*cb}:{DA+4*cb+3}]'
            A(f'v_mfma_f32_16x16x32_bf16 v[{DA+4*cb}:{DA+4*cb+3}], v[{r}:{r+3}], v[{b}:{b+3}], {c}')
        if t + 4 < 8:
            dload(t + 4)
            out += 9
    assert out == 0
    A('s_nop 7')
    A('s_nop 0')
    A('v_lshlrev_b32 v14, 2, v0')
    A('s_lshl_b32 s9, s2, 8')
    A(f's_add_u32 s9, s9, {W_YP}')
    for cb in range(9):
        xy_combine(DA+4*cb, 20+cb, 15)
        A(f'buffer_store_dword v{20+cb}, v14, s[52:55], s9 offen sc1')
        A('s_add_u32 s9, s9, 18432')
    A('s_waitcnt vmcnt(0)')
    A('v_mov_b32 v9, 1')
    A('v_mov_b32 v10, 128')
    A('s_mov_b64 exec, 1')
    A('buffer_atomic_add v9, v10, s[64:67], 0 offen sc1')
    A('s_endpgm')

    LBL('L_gwave')
    A('s_cmp_lg_u32 s5, 9')
    A('s_cbranch_scc1 L_end')
    A('s_cmp_ge_u32 s4, 9')
    A('s_cbranch_scc1 L_end')
    A('s_setprio 0')
    A('v_mov_b32 v10, 128')
    A(f's_mov_b32 s12, {cfg.spin_max}')
    LBL('L_poll3')
    A('s_sleep 32')
    A('buffer_load_dword v9, v10, s[64:67], 0 offen sc1')
    A('s_waitcnt vmcnt(0)')
    A('v_cmp_gt_u32 vcc, 72, v9')
    A('s_sub_u32 s12, s12, 1')
    A('s_cmp_eq_u32 s12, 0')
    A('s_cbranch_scc1 L_poll3_done')
    A('s_cbranch_vccnz L_poll3')
    LBL('L_poll3_done')
    A('s_mul_i32 s9, s4, 18432')
    A(f's_add_u32 s9, s9, {W_YP}')
    A('v_lshlrev_b32 v10, 4, v0')
    YR = 64
    for k in range(18):
        A(f'buffer_load_dwordx4 v[{YR+4*k}:{YR+4*k+3}], v10, s[52:55], s9 offen offset:{(k%4)*1024} sc1')
        if k % 4 == 3:
            A('s_add_u32 s9, s9, 4096')
    A('s_waitcnt vmcnt(0)')
    for k in range(1, 18):
        for r in range(4):
            A(f'v_add_f32 v{YR+r}, v{YR+r}, v{YR+4*k+r}')
    for r in range(4):
        xrow_allreduce('v_add_f32', YR+r, 9)
    for r in range(4):
        round_bf16(YR+r)
        A(f'v_mul_f32 v9, {f32(-math.log2(math.e))}, v{YR+r}')
        A('v_exp_f32 v9, v9')
        A('s_nop 0')
        A('v_add_f32 v9, 1.0, v9')
        A('v_rcp_f32 v9, v9')
        A('s_nop 0')
        A(f'v_mul_f32 v{YR+r}, v{YR+r}, v9')
        round_bf16(YR+r)
    A('v_and_b32 v10, 15, v0')
    A('v_lshlrev_b32 v10, 4, v10')
    A(f'ds_write_b128 v10, v[{YR}:{YR+3}] offset:{GV}')
    A('s_waitcnt lgkmcnt(0)')
    A('s_endpgm')

    LBL('L_init')
    A('s_setprio 0')
    for r in range(4):
        A(f'v_mov_b32 v{12+r}, -1')
    A('v_lshlrev_b32 v9, 4, v0')
    A('s_lshl_b32 s9, s4, 4')
    A('s_add_u32 s9, s9, s5')
    A('s_lshl_b32 s9, s9, 10')
    A('buffer_store_dwordx4 v[12:15], v9, s[52:55], s9 offen sc1')
    A('s_lshl_b32 s9, s4, 8')
    A('s_lshl_b32 s10, s5, 3')
    A('s_add_u32 s9, s9, s10')
    A(f's_add_u32 s9, s9, {W_ML}')
    A('v_lshlrev_b32 v10, 7, v0')
    A('s_mov_b64 exec, 3')
    A('buffer_store_dwordx2 v[12:13], v10, s[52:55], s9 offen sc1')
    A('s_mov_b64 exec, -1')
    A('s_cmp_ge_u32 s5, 9')
    A('s_cbranch_scc1 L_init2')
    A('s_lshl_b32 s9, s5, 14')
    A('s_lshl_b32 s10, s4, 10')
    A('s_add_u32 s9, s9, s10')
    A(f's_add_u32 s9, s9, {W_SP}')
    A('buffer_store_dwordx4 v[12:15], v9, s[52:55], s9 offen sc1')
    LBL('L_init2')
    A('s_waitcnt vmcnt(0)')
    A('v_mov_b32 v9, 1')
    A('v_mov_b32 v10, 0')
    A('s_mov_b64 exec, 1')
    A('buffer_atomic_add v9, v10, s[64:67], 0 offen sc1')
    A('s_mov_b64 exec, -1')
    A(f's_mov_b32 s12, {cfg.spin_max}')
    A('s_movk_i32 s13, 256')
    LBL('L_poll4')
    A('s_sleep 64')
    A('buffer_load_dword v9, v10, s[64:67], 0 offen sc1')
    A('s_waitcnt vmcnt(0)')
    A('v_cmp_gt_u32 vcc, s13, v9')
    A('s_sub_u32 s12, s12, 1')
    A('s_cmp_eq_u32 s12, 0')
    A('s_cbranch_scc1 L_end')
    A('s_cbranch_vccnz L_poll4')
    LBL('L_end')
    A('s_endpgm')

    L.append('.section .rodata,"a"')
    L.append('.p2align 6')
    L.append(f'.amdhsa_kernel {NAME}_kernel')
    L.append('  .amdhsa_next_free_vgpr 256')
    L.append('  .amdhsa_next_free_sgpr 96')
    L.append('  .amdhsa_accum_offset 256')
    L.append('  .amdhsa_group_segment_fixed_size 0')
    L.append('  .amdhsa_kernarg_size 96')
    L.append('  .amdhsa_user_sgpr_count 2')
    L.append('  .amdhsa_user_sgpr_kernarg_segment_ptr 1')
    L.append('  .amdhsa_system_sgpr_workgroup_id_x 1')
    L.append('  .amdhsa_float_denorm_mode_32 3')
    L.append('.end_amdhsa_kernel')
    return '\n'.join(L) + '\n'

if __name__ == '__main__':
    cfg = Cfg()
    out = f'cdna_kernels/{NAME}.s'
    for a in sys.argv[1:]:
        if a.startswith('out='):
            out = a[4:]
        else:
            k, v = a.split('=', 1)
            old = getattr(cfg, k)
            setattr(cfg, k, type(old)(v) if not isinstance(old, str) else v.replace('_', ' '))
    open(out, 'w').write(gen(cfg))
    print('wrote', out)
```

```python
import sys, struct, math

NAME = 'recurrent_scan__gqa_block_cached__geglu_ffn__decode'

def f32(v):
    return hex(struct.unpack('<I', struct.pack('<f', v))[0])

LOG2E = f32(math.log2(math.e))
SCALE = f32(128 ** -0.5)

XN, QB, HB, GV, TP, OB = 0, 1280, 1792, 1920, 2240, 6592
TPS = 1088
LDS_BYTES = 7168
W_EP, W_CT, W_QX, W_OP, W_ML, W_SP, W_YP, W_ST = 0, 0x1000, 0x10000, 0x50000, 0xD0000, 0xE0000, 0x130000, 0x200000
WS_BYTES = 0x230000
OOB = 0x40000000

class Cfg:
    R = 6
    N = 5
    St = 28
    N0 = 5
    NF = 10
    TH = 1920
    PRE = 5
    kpat = 3
    dmode = 0
    abl = 0
    qsleep = 24
    qpre = 0
    kflags = 'nt'
    vflags = 'nt'
    wflags = 'nt'
    aux_prio = 2
    FN = 8
    spin_max = 1 << 22
    stamps = 0
    xmap = 0

def gen(cfg):
    L = []
    def A(s):
        L.append('    ' + s)
    def LBL(s):
        L.append(s + ':')
    def C(s):
        L.append('    ; ' + s)
    R, N, St = cfg.R, cfg.N, cfg.St
    hdr = open('cdna_kernels/%s.s.ref' % NAME).read().split('\n')
    for line in hdr:
        if line.startswith('; @launch'):
            break
        if line.startswith(';'):
            L.append(line)
    L.append(f'; @launch grid=(256,1,1) block=(384,1,1) lds={LDS_BYTES}')
    L.append('.amdgcn_target "amdgcn-amd-amdhsa--gfx950"')
    L.append('.text')
    L.append(f'.globl {NAME}_kernel')
    L.append('.p2align 8')
    L.append(f'.type {NAME}_kernel,@function')
    LBL(f'{NAME}_kernel')

    def srd(d, lo, nbytes):
        A(f's_mov_b32 s{d}, s{lo}')
        A(f's_and_b32 s{d+1}, s{lo+1}, 0xffff')
        A(f's_mov_b32 s{d+2}, {nbytes}')
        A(f's_mov_b32 s{d+3}, 0x20000')
    DPPM = 'row_mask:0xf bank_mask:0xf'
    def row_allreduce(op, v):
        for pat in ['quad_perm:[1,0,3,2]', 'quad_perm:[2,3,0,1]', 'row_half_mirror', 'row_mirror']:
            A('s_nop 1')
            A(f'{op}_dpp v{v}, v{v}, v{v} {pat} {DPPM}')
    def swap_reduce(sw, op, v, t, E):
        E(f'v_mov_b32 v{t}, v{v}')
        E('s_nop 1')
        E(f'{sw} v{v}, v{t}')
        E('s_nop 1')
        E(f'{op} v{v}, v{v}, v{t}')
    def xrow_allreduce(op, v, t, emit=None):
        E = emit or A
        for sw in ['v_permlane16_swap_b32', 'v_permlane32_swap_b32']:
            swap_reduce(sw, op, v, t, E)
    def round_bf16(v):
        A(f'v_cvt_pk_bf16_f32 v{v}, v{v}, v{v}')
        A(f'v_lshlrev_b32 v{v}, 16, v{v}')
    def xy_combine(acc, dst, t):
        A(f'v_cndmask_b32 v{dst}, v{acc}, v{acc+3}, s[14:15]')
        A(f'v_cndmask_b32 v{t}, v{acc+2}, v{acc+1}, s[14:15]')
        A('s_nop 1')
        A(f'v_add_f32_dpp v{dst}, v{t}, v{dst} row_ror:8 {DPPM}')
    def tag_check(regs, t0, t1, again, done):
        regs = list(regs)
        A(f'v_max_u32 v{t0}, v{regs[0]}, v{regs[1]}')
        A(f'v_min_u32 v{t1}, v{regs[0]}, v{regs[1]}')
        rest = regs[2:]
        while len(rest) >= 2:
            a, b = rest[0], rest[1]; rest = rest[2:]
            A(f'v_max3_u32 v{t0}, v{t0}, v{a}, v{b}')
            A(f'v_min3_u32 v{t1}, v{t1}, v{a}, v{b}')
        if rest:
            A(f'v_max_u32 v{t0}, v{t0}, v{rest[0]}')
            A(f'v_min_u32 v{t1}, v{t1}, v{rest[0]}')
        A(f'v_xor_b32 v{t0}, s79, v{t0}')
        A(f'v_xor_b32 v{t1}, s79, v{t1}')
        A(f'v_or_b32 v{t0}, v{t0}, v{t1}')
        A(f'v_cmp_ne_u32 vcc, 0, v{t0}')
        A('s_sub_u32 s12, s12, 1')
        A('s_cmp_eq_u32 s12, 0')
        A(f's_cbranch_scc1 {done}')
        A(f's_cbranch_vccnz {again}')
        LBL(done)
    def stamp(k):
        if not cfg.stamps: return
        A(f's_memrealtime s[{90+2*k}:{91+2*k}]')
    def END():
        if cfg.stamps:
            stamp(5)
            A('s_waitcnt lgkmcnt(0)')
            A('s_mov_b64 exec, 1')
            for k in range(12):
                A(f'v_mov_b32 v{240+k}, s{90+k}')
            A('v_mov_b32 v252, 0')
            for k in range(3):
                A(f'buffer_store_dwordx4 v[{240+4*k}:{243+4*k}], v252, s[52:55], s89 offen offset:{16*k}')
        A('s_endpgm')

    A('s_cmp_ge_u32 s2, 256')
    A('s_cbranch_scc1 L_exit')
    A('s_load_dwordx16 s[16:31], s[0:1], 0')
    A('s_load_dwordx8 s[32:39], s[0:1], 64')
    A('v_lshrrev_b32 v1, 6, v0')
    A('v_and_b32 v0, 63, v0')
    A('v_readfirstlane_b32 s3, v1')
    if cfg.xmap == 0:
        A('s_lshr_b32 s4, s2, 4')
        A('s_and_b32 s5, s2, 15')
    else:
        A('s_and_b32 s4, s2, 15')
        A('s_lshr_b32 s5, s2, 4')
    MK = 2
    VG, VH = 6, 7
    A('v_and_b32 v9, 1, v0')
    A('v_lshlrev_b32 v9, 4, v9')
    A('v_mov_b32 v10, 0xffff')
    A('v_lshlrev_b32 v9, v9, v10')
    A('v_bfe_u32 v10, v0, 1, 2')
    for r in range(4):
        A(f'v_cmp_eq_u32 vcc, {r}, v10')
        A('s_nop 1')
        A(f'v_cndmask_b32 v{MK+r}, 0, v9, vcc')
    A(f'v_lshrrev_b32 v{VG}, 4, v0')
    A(f'v_bfe_u32 v{VH}, v0, 3, 1')
    A(f'v_cmp_eq_u32 s[14:15], 1, v{VH}')
    A('s_mov_b32 s6, 0x01000100')
    A('s_mov_b32 s7, 0x03020302')
    A(f's_mov_b32 s8, {LOG2E}')
    A('s_waitcnt lgkmcnt(0)')
    A(f's_load_dword s80, s[38:39], {W_EP}')
    srd(52, 38, WS_BYTES)
    srd(60, 16, 1152)
    if cfg.stamps:
        A('s_lshl_b32 s89, s2, 3')
        A('s_add_u32 s89, s89, s3')
        A('s_lshl_b32 s89, s89, 6')
        A(f's_add_u32 s89, s89, {W_ST}')
        for k in range(90, 102): A(f's_mov_b32 s{k}, 0')
        stamp(0)
    A('s_cmp_ge_u32 s3, 4')
    A('s_cbranch_scc1 L_aux')

    VKO, VVO = 9, 10
    QF = 12
    DA_, DB_ = 20, 24
    ACC = 28
    VM, VL = 32, 33
    T2 = 34
    S = 36; P = 40; T = 44
    BB = 48
    NB = 6
    BUF = [64 + 32*k for k in range(NB)]
    PRE = cfg.PRE
    assert 3 <= PRE <= NB-1
    SLOT = [BUF[PRE-1], BUF[PRE], BUF[0]]
    WO = BUF[1]
    srd(40, 18, 0x10000000)
    srd(44, 20, 0x10000000)
    if cfg.kpat == 8:
        A('v_bfe_u32 v11, v0, 1, 1')
        A('v_lshlrev_b32 v11, 10, v11')
        A(f'v_bfe_u32 v{VKO}, v0, 2, 2')
        A(f'v_lshl_add_u32 v11, v{VKO}, 8, v11')
        A(f'v_and_b32 v{VKO}, 1, v0')
        A(f'v_lshl_add_u32 v11, v{VKO}, 6, v11')
        A(f'v_lshl_add_u32 v{VKO}, v{VG}, 4, v11')
    else:
        A('v_and_b32 v11, 15, v0')
        A('v_lshlrev_b32 v11, 6, v11')
        A(f'v_lshl_add_u32 v{VKO}, v{VG}, 4, v11')
    A(f'v_lshlrev_b32 v{VVO}, 4, v0')
    A('s_lshl_b32 s76, s4, 24')
    A('s_lshl_b32 s11, s5, 2')
    A('s_add_u32 s11, s11, s3')
    A('s_mov_b32 s10, 0')
    lab = [0]
    def new_ticket(static_only, drain_label=None):
        lab[0] += 1
        n = lab[0]
        if not static_only:
            A('s_waitcnt lgkmcnt(0)')
            A('s_cmp_ge_u32 s11, 2048')
            A(f's_cbranch_scc1 {drain_label}')
        A('s_mov_b32 s12, s11')
        A('s_add_u32 s10, s10, 1')
        A('s_add_u32 s11, s11, 64')
        if not static_only:
            A(f's_cmp_lt_u32 s10, {St}')
            A(f's_cbranch_scc1 L_tk{n}')
            if cfg.dmode == 2:
                A('s_mov_b32 s83, 1')
                A('s_atomic_add s83, s[74:75], 0 glc')
            else:
                A('s_mov_b32 s11, 1')
                A('s_atomic_add s11, s[74:75], 0 glc')
            LBL(f'L_tk{n}')
        if cfg.dmode == 1:
            A('s_lshl_b32 s9, s12, 13')
        else:
            A('s_lshr_b32 s9, s12, 6')
            A('s_lshl_b32 s9, s9, 7')
            A('s_and_b32 s13, s12, 63')
            A('s_or_b32 s9, s9, s13')
            A('s_lshl_b32 s9, s9, 12')
        A('s_add_u32 s9, s9, s76')
    def begin_issue(u, static_only=False, drain_label=None):
        if u % 2 == 0:
            new_ticket(static_only, drain_label)
        else:
            A(f's_add_u32 s9, s9, {4096 if cfg.dmode == 1 else 64*4096}')
    def one_load(buf, j, cap):
        if cap:
            A(f's_waitcnt vmcnt({cap-1})')
        r = buf + j*4
        if j < 4:
            A(f'buffer_load_dwordx4 v[{r}:{r+3}], v{VKO}, s[40:43], s9 offen offset:{((j&1)*128 + (j>>1)*2048) if cfg.kpat == 8 else j*1024} {cfg.kflags}')
        else:
            A(f'buffer_load_dwordx4 v[{r}:{r+3}], v{VVO}, s[44:47], s9 offen offset:{(j-4)*1024} {cfg.vflags}')
    assert St >= 4
    for u in range(PRE):
        begin_issue(u, static_only=True)
        for j in range(8):
            one_load(BUF[u], j, cfg.N0 if (u*8 + j >= cfg.N0) else 0)
            if u == 0 and j == 4:
                srd(48, 24, 0 if cfg.abl & 8 else 4096*1152)
                srd(56, 34, 1152)
                A('s_lshl_b32 s12, s4, 8')
                A(f's_add_u32 s12, s12, {W_CT}')
                A('s_add_u32 s74, s38, s12')
                A('s_addc_u32 s75, s39, 0')
                for r in range(4):
                    A(f'v_mov_b32 v{ACC+r}, 0')
                A(f'v_mov_b32 v{VM}, 0xff000000')
                A(f'v_mov_b32 v{VL}, 0')
                A('v_and_b32 v8, 1, v0')
                A(f'v_lshl_add_u32 v8, v{VG}, 1, v8')
                A('v_mul_u32_u24 v8, 9216, v8')
                A(f'v_bfe_u32 v{T}, v0, 1, 3')
                A(f'v_lshl_add_u32 v8, v{T}, 4, v8')
                A('s_lshl_b32 s81, s4, 8')
                A('s_lshl_b32 s82, s3, 6')
                A('s_add_u32 s81, s81, s82')
                A('s_mul_i32 s81, s81, 1152')
                A('s_lshl_b32 s82, s5, 7')
                A('s_add_u32 s81, s81, s82')
                A('s_cmp_ge_u32 s5, 9')
                A(f's_cselect_b32 s81, {OOB}, s81')
                A('s_add_u32 s82, s81, 4608')
    def wo_load(t):
        A(f'buffer_load_dwordx4 v[{WO+4*t}:{WO+4*t+3}], v8, s[48:51], s{81 if t < 4 else 82} offen offset:{(t%4)*1152} {cfg.wflags}')
    A(f'v_lshlrev_b32 v11, 8, v{VH}')
    A(f'v_lshl_add_u32 v11, v{VG}, 4, v11')
    A(f'v_and_b32 v{T}, {1 if cfg.kpat == 8 else 3}, v0')
    A(f'v_lshl_add_u32 v11, v{T}, 6, v11')
    A('s_barrier')
    stamp(1)
    for j in range(2 if cfg.kpat == 8 else 1):
        A(f'ds_read_b128 v[{QF+4*j}:{QF+4*j+3}], v11 offset:{QB + j*128}')
    A('s_waitcnt lgkmcnt(0)')
    A('s_add_u32 s79, s80, 1')

    def body(kb):
        vb = kb + 16
        out = []
        E = out.append
        if cfg.kpat == 8:
            for half, D in ((0, DA_), (1, DB_)):
                E(f'v_mfma_f32_16x16x32_bf16 v[{D}:{D+3}], v[{kb+8*half}:{kb+8*half+3}], v[{QF}:{QF+3}], 0')
                E(f'v_mfma_f32_16x16x32_bf16 v[{D}:{D+3}], v[{kb+8*half+4}:{kb+8*half+7}], v[{QF+4}:{QF+7}], v[{D}:{D+3}]')
            E('@LOAD')
            E('s_nop 7')
            for half, D in ((0, DA_), (1, DB_)):
                E(f'v_mov_b32_dpp v{T}, v{D+1} quad_perm:[1,1,3,3] {DPPM}')
                E(f'v_mov_b32_dpp v{T+1}, v{D+3} quad_perm:[1,1,3,3] {DPPM}')
                E(f'v_add_f32_dpp v{S+2*half}, v{D}, v{T} quad_perm:[0,0,2,2] {DPPM}')
                E(f'v_add_f32_dpp v{S+2*half+1}, v{D+2}, v{T+1} quad_perm:[0,0,2,2] {DPPM}')
            E('@LOAD')
        else:
            DD = [DA_, DB_, BB, BB+4]
            for j in range(4):
                E(f'v_mfma_f32_16x16x32_bf16 v[{DD[j]}:{DD[j]+3}], v[{kb+4*j}:{kb+4*j+3}], v[{QF}:{QF+3}], 0')
            E('@LOAD')
            E('s_nop 4')
            for j in range(4):
                if j == 2: E('@LOAD')
                E(f'v_mov_b32_dpp v{S+j}, v{DD[j]} quad_perm:[0,0,0,0] {DPPM}')
                for c in range(1, 4):
                    E(f'v_add_f32_dpp v{S+j}, v{DD[j]+c}, v{S+j} quad_perm:[{c},{c},{c},{c}] {DPPM}')
        for rep in range(2):
            E(f'v_cvt_pk_bf16_f32 v{T}, v{S}, v{S+1}')
            E(f'v_cvt_pk_bf16_f32 v{T+1}, v{S+2}, v{S+3}')
            E(f'v_lshlrev_b32 v{S}, 16, v{T}')
            E(f'v_and_b32 v{S+1}, 0xffff0000, v{T}')
            E(f'v_lshlrev_b32 v{S+2}, 16, v{T+1}')
            E(f'v_and_b32 v{S+3}, 0xffff0000, v{T+1}')
            if rep == 0:
                for r in range(4):
                    E(f'v_mul_f32 v{S+r}, {SCALE}, v{S+r}')
        E('@LOAD')
        for r in range(4):
            E(f'v_mul_f32 v{S+r}, s8, v{S+r}')
        for r in range(4):
            E(f'v_floor_f32 v{DA_+r}, v{S+r}')
        E(f'v_max3_f32 v{T}, v{DA_}, v{DA_+1}, v{DA_+2}')
        E(f'v_max3_f32 v{T}, v{T}, v{DA_+3}, v{VM}')
        for r in range(4):
            E(f'v_sub_f32 v{P+r}, v{S+r}, v{DA_+r}')
        xrow_allreduce('v_max_f32', T, T+1, E)
        E('@LOAD')
        for r in range(4):
            E(f'v_exp_f32 v{P+r}, v{P+r}')
        E(f'v_sub_f32 v{T+1}, v{VM}, v{T}')
        E(f'v_cvt_i32_f32 v{T+1}, v{T+1}')
        E(f'v_mov_b32 v{VM}, v{T}')
        for r in range(4):
            E(f'v_sub_f32 v{DA_+r}, v{DA_+r}, v{T}')
        for r in range(4):
            E(f'v_cvt_i32_f32 v{DA_+r}, v{DA_+r}')
        E('@LOAD')
        for r in range(4):
            E(f'v_ldexp_f32 v{P+r}, v{P+r}, v{DA_+r}')
        for r in range(4):
            E(f'v_ldexp_f32 v{ACC+r}, v{ACC+r}, v{T+1}')
        E(f'v_ldexp_f32 v{VL}, v{VL}, v{T+1}')
        E(f'v_add_f32 v{T+2}, v{P}, v{P+1}')
        E(f'v_add_f32 v{T+3}, v{P+2}, v{P+3}')
        E(f'v_add_f32 v{T+2}, v{T+2}, v{T+3}')
        E(f'v_add_f32 v{VL}, v{VL}, v{T+2}')
        E('@LOAD')
        for k in range(4):
            E(f'v_cvt_pk_bf16_f32 v{T2 + (k&1)}, v{P+k}, v{P+k}')
            for r in range(4):
                E(f'v_and_b32 v{BB+4*k+r}, v{MK+r}, v{T2 + (k&1)}')
            if k == 1:
                E('@LOAD')
        E('@VWAIT')
        E('s_nop 1')
        for k in range(4):
            E(f'v_mfma_f32_16x16x32_bf16 v[{ACC}:{ACC+3}], v[{vb+4*k}:{vb+4*k+3}], v[{BB+4*k}:{BB+4*k+3}], v[{ACC}:{ACC+3}]')
        E('@LOAD')
        return out
    def emit_body(kb, loads, vwait=None):
        pt = 0
        for ins in body(kb):
            if ins == '@LOAD':
                for f in loads.get(pt, []): f()
                pt += 1
            elif ins == '@VWAIT':
                if vwait is not None: A(f's_waitcnt vmcnt({vwait})')
            else:
                A(ins)

    begin_issue(PRE, static_only=True)
    nl = 0
    for g in range(PRE-1):
        A(f's_waitcnt vmcnt({min(63, 8*(PRE-1-g) + nl)})')
        want = (8*(g+1) + (PRE-1) - 1)//(PRE-1)
        k = want - nl
        pts = [ (p*8)//k for p in range(k) ] if k else []
        loads = {}
        for p in pts:
            loads.setdefault(p, []).append((lambda jj: (lambda: one_load(BUF[PRE], jj, N)))(nl))
            nl += 1
        emit_body(BUF[g], loads)
    assert nl == 8

    def group(i, fast):
        u = PRE - 1 + i + 2
        cap = cfg.NF if fast else N
        begin_issue(u, drain_label=f'L_drain{i % 3}')
        if u % 2 == 0:
            if not fast:
                A(f's_cmp_ge_u32 s12, {cfg.TH}')
                A(f's_cbranch_scc1 L_fmid{i}')
            else:
                LBL(f'L_fmid{i}')
        A('s_waitcnt vmcnt(8)')
        loads = {p: [(lambda jj: (lambda: one_load(SLOT[(i+2) % 3], jj, cap)))(p)] for p in range(8)}
        emit_body(SLOT[i % 3], loads)
    LBL('L_loop')
    for i in range(6):
        group(i, False)
    A('s_branch L_loop')
    LBL('L_floop')
    for i in range(6):
        group(i, True)
    A('s_branch L_floop')
    for k in range(3):
        LBL(f'L_drain{k}')
        for t in range(8):
            wo_load(t)
        A('s_waitcnt vmcnt(16)')
        emit_body(SLOT[k], {})
        A('s_waitcnt vmcnt(12)')
        emit_body(SLOT[(k+1) % 3], {}, vwait=8)
        if k < 2:
            A('s_branch L_tail')

    LBL('L_tail')
    stamp(2)
    xrow_allreduce('v_add_f32', VL, T)
    A(f's_mul_i32 s10, s3, {TPS}')
    A('v_and_b32 v11, 7, v0')
    A(f'v_lshl_add_u32 v11, v{VG}, 5, v11')
    A(f'v_lshl_add_u32 v11, v{VH}, 7, v11')
    A('v_lshl_add_u32 v11, v11, 2, s10')
    A(f'v_lshl_add_u32 v{T}, v{VH}, 3, s10')
    for r in range(4):
        A(f'ds_write_b32 v11, v{ACC+r} offset:{TP + r*32}')
    A(f'ds_write_b64 v{T}, v[{VM}:{VM+1}] offset:{TP + 1024}')
    A('s_lshl_b32 s10, s3, 8')
    A('v_lshl_add_u32 v11, v0, 2, s10')
    A('s_lshr_b32 s77, s3, 1')
    A('s_lshl_b32 s12, s77, 3')
    A(f'v_mov_b32 v{T}, s12')
    A('s_waitcnt lgkmcnt(0)')
    A('s_barrier')
    stamp(3)
    RA = 132
    for w in range(4):
        A(f'ds_read_b32 v{RA+w}, v11 offset:{TP + w*TPS}')
        A(f'ds_read_b64 v[{RA+4+2*w}:{RA+5+2*w}], v{T} offset:{TP + w*TPS + 1024}')
    A('v_lshlrev_b32 v11, 1, v11')
    M_, Lr, O_ = RA+12, RA+14, RA+16
    A(f'v_mov_b32 v{M_+1}, s79')
    A(f'v_mov_b32 v{Lr+1}, s79')
    A(f'v_mov_b32 v{O_+1}, s79')
    A('s_lshl_b32 s12, s4, 4')
    A('s_add_u32 s12, s12, s5')
    A('s_lshl_b32 s12, s12, 11')
    A(f's_add_u32 s12, s12, {W_OP}')
    A('s_lshl_b32 s13, s4, 1')
    A('s_add_u32 s13, s13, s77')
    A('s_lshl_b32 s13, s13, 8')
    A(f's_add_u32 s13, s13, {W_ML}')
    A('s_waitcnt lgkmcnt(0)')
    A(f'v_max3_f32 v{M_}, v{RA+4}, v{RA+6}, v{RA+8}')
    A(f'v_max_f32 v{M_}, v{M_}, v{RA+10}')
    for w in range(4):
        A(f'v_sub_f32 v{RA+4+2*w}, v{RA+4+2*w}, v{M_}')
        A(f'v_cvt_i32_f32 v{RA+4+2*w}, v{RA+4+2*w}')
    for w in range(4):
        A(f'v_ldexp_f32 v{RA+w}, v{RA+w}, v{RA+4+2*w}')
        A(f'v_ldexp_f32 v{RA+5+2*w}, v{RA+5+2*w}, v{RA+4+2*w}')
    A(f'v_add_f32 v{O_}, v{RA}, v{RA+1}')
    A(f'v_add_f32 v{Lr}, v{RA+5}, v{RA+7}')
    for w in range(2, 4):
        A(f'v_add_f32 v{O_}, v{O_}, v{RA+w}')
        A(f'v_add_f32 v{Lr}, v{Lr}, v{RA+5+2*w}')
    A(f'buffer_store_dwordx2 v[{O_}:{O_+1}], v11, s[52:55], s12 offen sc1')
    A('s_and_b32 s12, s3, 1')
    A('s_cmp_lg_u32 s12, 0')
    A('s_cbranch_scc1 L_noml')
    A('s_lshl_b32 s12, s5, 4')
    A(f'v_mov_b32 v{T}, s12')
    A('s_mov_b64 exec, 1')
    A(f'buffer_store_dwordx2 v[{M_}:{M_+1}], v{T}, s[52:55], s13 offen sc1')
    A(f'buffer_store_dwordx2 v[{Lr}:{Lr+1}], v{T}, s[52:55], s13 offen offset:8 sc1')
    A('s_mov_b64 exec, -1')
    LBL('L_noml')
    A('s_cmp_lt_u32 s5, 9')
    A('s_cbranch_scc1 L_wo')
    A('s_cmp_lg_u32 s5, 13')
    A('s_cbranch_scc1 L_end')
    A('s_cmp_ge_u32 s4, 9')
    A('s_cbranch_scc1 L_end')
    A('s_cmp_lg_u32 s3, 0')
    A('s_cbranch_scc1 L_end')
    A('s_branch L_final')

    LBL('L_wo')
    OPR = 164
    MLR = 160
    A('s_lshl_b32 s68, s4, 15')
    A(f's_add_u32 s68, s68, {W_OP}')
    for k in range(1, 8):
        A(f's_add_u32 s{68+k}, s68, {4096*k}')
    A('v_and_b32 v12, 15, v0')
    A('v_lshlrev_b32 v12, 4, v12')
    A(f's_mov_b32 s12, {cfg.spin_max}')
    LBL('L_poll1')
    A(f'buffer_load_dwordx4 v[{MLR}:{MLR+3}], v12, s[52:55], s13 offen sc1')
    for p in range(16):
        A(f'buffer_load_dwordx2 v[{OPR+2*p}:{OPR+2*p+1}], v11, s[52:55], s{68 + p//2} offen offset:{(p%2)*2048} sc1')
    A('s_waitcnt vmcnt(0)')
    tag_check([MLR+1, MLR+3] + [OPR+2*p+1 for p in range(16)], T, T+1, 'L_poll1', 'L_poll1_done')
    stamp(4)
    A(f'v_mov_b32 v{T}, v{MLR}')
    row_allreduce('v_max_f32', T)
    A(f'v_sub_f32 v{T}, v{MLR}, v{T}')
    A(f'v_cvt_i32_f32 v{T}, v{T}')
    A(f'v_ldexp_f32 v{T+1}, v{MLR+2}, v{T}')
    A(f'v_ldexp_f32 v{T}, 1.0, v{T}')
    row_allreduce('v_add_f32', T+1)
    A(f'v_rcp_f32 v{T+1}, v{T+1}')
    for p in range(16):
        A(f'v_readlane_b32 s{16+p}, v{T}, {p}')
    A('s_nop 1')
    A(f'v_mul_f32 v{T+2}, s16, v{OPR}')
    for p in range(1, 16):
        A(f'v_fmac_f32 v{T+2}, s{16+p}, v{OPR+2*p}')
    A(f'v_mul_f32 v{T+2}, v{T+2}, v{T+1}')
    A(f'v_cvt_pk_bf16_f32 v{T+2}, v{T+2}, v{T+2}')
    A('s_lshl_b32 s12, s3, 7')
    A('v_lshl_add_u32 v12, v0, 1, s12')
    A(f'ds_write_b16 v12, v{T+2} offset:{OB}')
    A('v_lshrrev_b32 v12, 3, v0')
    A('v_lshl_add_u32 v12, v12, 4, s12')
    A('s_waitcnt lgkmcnt(0)')
    A(f'ds_read_b128 v[{S}:{S+3}], v12 offset:{OB}')
    A('s_waitcnt lgkmcnt(0)')
    for t in range(8):
        b = BB + 4*(t % 4)
        A(f'v_perm_b32 v{T}, v{S + t//2}, v{S + t//2}, s{6 + (t & 1)}')
        for r in range(4):
            A(f'v_and_b32 v{b+r}, v{MK+r}, v{T}')
        A('s_nop 1')
        c = '0' if t == 0 else f'v[{ACC}:{ACC+3}]'
        A(f'v_mfma_f32_16x16x32_bf16 v[{ACC}:{ACC+3}], v[{WO+4*t}:{WO+4*t+3}], v[{b}:{b+3}], {c}')
    A('s_lshl_b32 s12, s5, 15')
    A('s_lshl_b32 s13, s4, 2')
    A('s_add_u32 s13, s13, s3')
    A('s_lshl_b32 s13, s13, 9')
    A('s_add_u32 s12, s12, s13')
    A(f's_add_u32 s12, s12, {W_SP}')
    A('v_lshlrev_b32 v12, 3, v0')
    A(f'v_mov_b32 v{T+1}, s79')
    A('s_nop 0')
    xy_combine(ACC, T, T+2)
    A(f'buffer_store_dwordx2 v[{T}:{T+1}], v12, s[52:55], s12 offen sc1')
    END()

    LBL('L_final')
    FR = 128
    A('s_lshl_b32 s68, s4, 15')
    A(f's_add_u32 s68, s68, {W_SP}')
    for k in range(1, 8):
        A(f's_add_u32 s{68+k}, s68, {4096*k}')
    A('v_and_b32 v12, 31, v0')
    A('v_lshlrev_b32 v13, 2, v12')
    A('s_lshl_b32 s13, s4, 7')
    A('buffer_load_dword v14, v13, s[60:63], s13 offen')
    A('v_lshlrev_b32 v12, 3, v12')
    A(f'ds_read_b64 v[16:17], v12 offset:{GV}')
    A(f's_mov_b32 s12, {cfg.spin_max}')
    LBL('L_poll2')
    for k in range(32):
        A(f'buffer_load_dwordx4 v[{FR+4*k}:{FR+4*k+3}], v{VVO}, s[52:55], s{68 + k//4} offen offset:{(k%4)*1024} sc1')
    A('s_waitcnt vmcnt(0) lgkmcnt(0)')
    tag_check([FR+2*k+1 for k in range(64)], T, T+1, 'L_poll2', 'L_poll2_done')
    stamp(4)
    for k in range(1, 32):
        A(f'v_add_f32 v{FR}, v{FR}, v{FR+4*k}')
        A(f'v_add_f32 v{FR+2}, v{FR+2}, v{FR+4*k+2}')
    for r in (0, 2):
        swap_reduce('v_permlane32_swap_b32', 'v_add_f32', FR+r, T, A)
    for i, r in enumerate((0, 2)):
        round_bf16(FR+r)
        A(f'v_mul_f32 v{FR+r}, v{FR+r}, v{16+i}')
        round_bf16(FR+r)
    A('v_lshlrev_b32 v20, 16, v14')
    A('v_and_b32 v21, 0xffff0000, v14')
    A(f'v_add_f32 v20, v20, v{FR}')
    A(f'v_add_f32 v21, v21, v{FR+2}')
    A('v_cvt_pk_bf16_f32 v20, v20, v21')
    A('s_mov_b64 exec, 0xffffffff')
    A('buffer_store_dword v20, v13, s[56:59], s13 offen')
    A('s_cmp_lg_u32 s4, 0')
    A('s_cbranch_scc1 L_end')
    A('v_mov_b32 v21, s79')
    A(f'v_mov_b32 v22, {W_EP}')
    A('s_mov_b64 exec, 1')
    A('buffer_store_dword v21, v22, s[52:55], 0 offen sc1')
    END()

    LBL('L_aux')
    A(f's_setprio {cfg.aux_prio}')
    A('s_cmp_eq_u32 s3, 5')
    A('s_cbranch_scc1 L_qcons')
    A('s_cmp_ge_u32 s5, 8')
    A('s_cbranch_scc1 L_ffn0')

    XR = 12; XF = 18; SU, TT, VV = 28, 29, 30
    def xloads():
        A('v_lshlrev_b32 v9, 4, v0')
        A('v_lshlrev_b32 v10, 2, v0')
        A(f'buffer_load_dwordx4 v[{XR}:{XR+3}], v9, s[60:63], 0 offen')
        A(f'buffer_load_dword v{XR+4}, v10, s[60:63], 0 offen offset:1024')
    def layernorm(after):
        A(f's_waitcnt vmcnt({after})')
        for k in range(5):
            A(f'v_lshlrev_b32 v{XF+2*k}, 16, v{XR+k}')
            A(f'v_and_b32 v{XF+2*k+1}, 0xffff0000, v{XR+k}')
        A(f'v_add_f32 v{SU}, v{XF}, v{XF+1}')
        for k in range(2, 10):
            A(f'v_add_f32 v{SU}, v{SU}, v{XF+k}')
        row_allreduce('v_add_f32', SU)
        xrow_allreduce('v_add_f32', SU, TT)
        A(f'v_mul_f32 v{SU}, {f32(1.0/576)}, v{SU}')
        A(f'v_cmp_gt_u32 vcc, 32, v0')
        A(f'v_sub_f32 v{TT}, v{XF}, v{SU}')
        A(f'v_mul_f32 v{VV}, v{TT}, v{TT}')
        for k in range(1, 8):
            A(f'v_sub_f32 v{TT}, v{XF+k}, v{SU}')
            A(f'v_fmac_f32 v{VV}, v{TT}, v{TT}')
        for k in range(8, 10):
            A(f'v_sub_f32 v{TT}, v{XF+k}, v{SU}')
            A(f'v_cndmask_b32 v{TT}, 0, v{TT}, vcc')
            A(f'v_fmac_f32 v{VV}, v{TT}, v{TT}')
        row_allreduce('v_add_f32', VV)
        xrow_allreduce('v_add_f32', VV, TT)
        A(f'v_mul_f32 v{VV}, {f32(1.0/576)}, v{VV}')
        round_bf16(VV)
        round_bf16(SU)
        A(f'v_add_f32 v{VV}, {f32(1e-5)}, v{VV}')
        round_bf16(VV)
        A(f'v_sqrt_f32 v{VV}, v{VV}')
        A('s_nop 0')
        round_bf16(VV)
        A(f'v_rcp_f32 v{TT}, v{VV}')
        for k in range(10):
            A(f'v_sub_f32 v{XF+k}, v{XF+k}, v{SU}')
            round_bf16(XF+k)
        for k in range(10):
            A(f'v_mul_f32 v31, v{XF+k}, v{TT}')
            A(f'v_fma_f32 v32, -v31, v{VV}, v{XF+k}')
            A(f'v_fma_f32 v{XF+k}, v32, v{TT}, v31')
        for k in range(5):
            A(f'v_cvt_pk_bf16_f32 v{XR+k}, v{XF+2*k}, v{XF+2*k+1}')
        A(f'ds_write_b128 v9, v[{XR}:{XR+3}] offset:{XN}')
        A(f'ds_write_b32 v10, v{XR+4} offset:{XN+1024}')
        A('s_waitcnt lgkmcnt(0)')

    C('q producer: rows 72*slot..+72, 256 columns of this kv head')
    srd(40, 22, 0 if cfg.abl & 4 else 576*8192)
    xloads()
    A('v_and_b32 v11, 1, v0')
    A(f'v_lshl_add_u32 v11, v{VG}, 1, v11')
    A(f's_mov_b32 s10, {9*8192}')
    A('v_mul_lo_u32 v11, v11, s10')
    A('v_bfe_u32 v17, v0, 1, 3')
    A('v_lshl_add_u32 v11, v17, 4, v11')
    A(f's_mul_i32 s9, s5, {72*8192}')
    A('s_lshl_b32 s10, s4, 9')
    A('s_add_u32 s9, s9, s10')
    QR = 100
    for t in range(9):
        for cb in range(4):
            r = QR + (t*4 + cb)*4
            A(f'buffer_load_dwordx4 v[{r}:{r+3}], v11, s[40:43], s9 offen offset:{cb*128} {cfg.wflags}')
        A('s_add_u32 s9, s9, 8192')
    A('s_lshl_b32 s9, s4, 8')
    A(f's_add_u32 s9, s9, {W_CT}')
    A(f'v_mov_b32 v33, {St*64}')
    A('v_mov_b32 v34, 0')
    A('s_cmp_eq_u32 s5, 0')
    A('s_cselect_b64 exec, 1, 0')
    A('s_cbranch_execz L_noct')
    A('buffer_store_dword v33, v34, s[52:55], s9 offen sc1')
    LBL('L_noct')
    A('s_mov_b64 exec, -1')
    stamp(1)
    layernorm(36)
    A('s_mul_i32 s10, s5, 144')
    A('v_lshrrev_b32 v17, 3, v0')
    A('v_mul_u32_u24 v17, 18, v17')
    A('v_add_u32 v17, s10, v17')
    XQ = 18
    for t in range(9):
        A(f'ds_read_u16 v{XQ+t}, v17 offset:{XN + 2*t}')
    A('s_waitcnt lgkmcnt(0)')
    A('s_add_u32 s79, s80, 1')
    stamp(2)
    QA = 40
    AB = 56
    for t in range(9):
        b = AB + 4*(t & 1)
        A(f'v_perm_b32 v9, v{XQ+t}, v{XQ+t}, s6')
        for r in range(4):
            A(f'v_and_b32 v{b+r}, v{MK+r}, v9')
        A(f's_waitcnt vmcnt({36 - 4*(t+1)})')
        A('s_nop 0')
        for cb in range(4):
            r = QR + (t*4 + cb)*4
            c = '0' if t == 0 else f'v[{QA+4*cb}:{QA+4*cb+3}]'
            A(f'v_mfma_f32_16x16x32_bf16 v[{QA+4*cb}:{QA+4*cb+3}], v[{r}:{r+3}], v[{b}:{b+3}], {c}')
    A('s_lshl_b32 s9, s4, 14')
    A('s_lshl_b32 s10, s5, 11')
    A('s_add_u32 s9, s9, s10')
    A(f's_add_u32 s9, s9, {W_QX}')
    A('v_lshlrev_b32 v10, 3, v0')
    for cb in range(4):
        A(f'v_mov_b32 v{21+2*cb}, s79')
    for cb in range(4):
        xy_combine(QA+4*cb, 20+2*cb, 9)
        A(f'buffer_store_dwordx2 v[{20+2*cb}:{21+2*cb}], v10, s[52:55], s9 offen offset:{cb*512} sc1')
    END()

    LBL('L_qcons')
    A('s_lshl_b32 s68, s4, 14')
    A(f's_add_u32 s68, s68, {W_QX}')
    for k in range(1, 4):
        A(f's_add_u32 s{68+k}, s68, {4096*k}')
    A('v_lshlrev_b32 v10, 4, v0')
    A('v_lshlrev_b32 v11, 2, v0')
    A(f's_mov_b32 s12, {cfg.spin_max}')
    A('s_waitcnt lgkmcnt(0)')
    A('s_add_u32 s79, s80, 1')
    sl = cfg.qsleep
    while sl > 0:
        A(f's_sleep {min(sl, 127)}'); sl -= 127
    if cfg.qpre:
        A('v_and_b32 v14, 31, v0')
        A('v_lshlrev_b32 v14, 9, v14')
        LBL('L_prepoll')
        A('s_sleep 2')
        A('buffer_load_dwordx2 v[16:17], v14, s[52:55], s68 offen offset:504 sc1')
        A('s_waitcnt vmcnt(0)')
        A('v_cmp_ne_u32 vcc, s79, v17')
        A('s_sub_u32 s12, s12, 1')
        A('s_cmp_eq_u32 s12, 0')
        A('s_cbranch_scc1 L_pollq')
        A('s_cbranch_vccnz L_prepoll')
    LBL('L_pollq')
    for k in range(16):
        A(f'buffer_load_dwordx4 v[{64+4*k}:{67+4*k}], v10, s[52:55], s{68 + k//4} offen offset:{(k%4)*1024} sc1')
    A('s_waitcnt vmcnt(0)')
    tag_check([64+2*k+1 for k in range(32)], 12, 13, 'L_pollq', 'L_pollq_done')
    stamp(1)
    for rc in range(1, 8):
        for h in range(2):
            for e in (0, 2):
                A(f'v_add_f32 v{64+4*h+e}, v{64+4*h+e}, v{64+4*(2*rc+h)+e}')
    A('v_cvt_pk_bf16_f32 v12, v64, v66')
    A('v_cvt_pk_bf16_f32 v13, v68, v70')
    A(f'ds_write_b32 v11, v12 offset:{QB}')
    A(f'ds_write_b32 v11, v13 offset:{QB+256}')
    A('s_waitcnt lgkmcnt(0)')
    stamp(2)
    A('s_barrier')
    A('s_cmp_lg_u32 s5, 13')
    A('s_cbranch_scc1 L_end')
    A('s_cmp_ge_u32 s4, 9')
    A('s_cbranch_scc1 L_end')
    A('s_mul_i32 s68, s4, 36864')
    A(f's_add_u32 s68, s68, {W_YP}')
    for k in range(1, 9):
        A(f's_add_u32 s{68+k}, s68, {4096*k}')
    A(f's_mov_b32 s12, {cfg.spin_max}')
    YR = 64
    LBL('L_poll3')
    A('s_sleep 127')
    A('s_sleep 127')
    for k in range(36):
        A(f'buffer_load_dwordx4 v[{YR+4*k}:{YR+4*k+3}], v10, s[52:55], s{68 + k//4} offen offset:{(k%4)*1024} sc1')
    A('s_waitcnt vmcnt(0)')
    tag_check([YR+2*k+1 for k in range(72)], 12, 13, 'L_poll3', 'L_poll3_done')
    for k in range(1, 36):
        A(f'v_add_f32 v{YR}, v{YR}, v{YR+4*k}')
        A(f'v_add_f32 v{YR+2}, v{YR+2}, v{YR+4*k+2}')
    for r in (0, 2):
        swap_reduce('v_permlane32_swap_b32', 'v_add_f32', YR+r, 9, A)
    for i, r in enumerate((0, 2)):
        round_bf16(YR+r)
        A(f'v_mul_f32 v9, {f32(-math.log2(math.e))}, v{YR+r}')
        A('v_exp_f32 v9, v9')
        A('s_nop 0')
        A('v_add_f32 v9, 1.0, v9')
        A('v_rcp_f32 v9, v9')
        A('s_nop 0')
        A(f'v_mul_f32 v{12+i}, v{YR+r}, v9')
        round_bf16(12+i)
    A('v_and_b32 v10, 31, v0')
    A('v_lshlrev_b32 v10, 3, v10')
    A(f'ds_write_b64 v10, v[12:13] offset:{GV}')
    A('s_waitcnt lgkmcnt(0)')
    END()

    LBL('L_ffn0')
    A('s_sub_u32 s78, s5, 8')
    A('s_lshl_b32 s78, s78, 4')
    A('s_add_u32 s78, s78, s4')
    A('s_cmp_ge_u32 s78, 72')
    A('s_cbranch_scc1 L_end')
    srd(40, 28, 0 if cfg.abl & 1 else 576*9216)
    srd(44, 30, 0 if cfg.abl & 1 else 576*9216)
    srd(48, 32, 0 if cfg.abl & 2 else 4608*1152)
    xloads()
    FX = 64
    FA = 48
    FB = 56
    FT = 9
    FRG = 104
    FNR = cfg.FN//2
    A('v_and_b32 v17, 1, v0')
    A(f'v_lshl_add_u32 v17, v{VG}, 1, v17')
    A(f's_mov_b32 s10, {72*9216}')
    A('v_mul_lo_u32 v11, v17, s10')
    A('v_bfe_u32 v17, v0, 1, 3')
    A('v_lshl_add_u32 v11, v17, 4, v11')
    A('s_lshl_b32 s9, s78, 7')
    def gload(t):
        for b in range(2):
            r = FRG + (t % FNR)*8 + b*4
            A(f'buffer_load_dwordx4 v[{r}:{r+3}], v11, s[{40+4*b}:{43+4*b}], s9 offen {cfg.wflags}')
        A('s_add_u32 s9, s9, 9216')
    for t in range(FNR):
        gload(t)
    layernorm(2*FNR)
    A('v_lshrrev_b32 v10, 3, v0')
    A('v_mul_u32_u24 v10, 144, v10')
    for k in range(9):
        A(f'ds_read_b128 v[{FX+4*k}:{FX+4*k+3}], v10 offset:{XN + 16*k}')
    A('s_waitcnt lgkmcnt(0)')
    A('s_add_u32 s79, s80, 1')
    out = 2*FNR
    for t in range(72):
        if t == 0:
            A('s_barrier')
            stamp(1)
        b = FB + 4*(t & 1)
        A(f'v_perm_b32 v{FT}, v{FX + t//2}, v{FX + t//2}, s{6 + (t & 1)}')
        for r in range(4):
            A(f'v_and_b32 v{b+r}, v{MK+r}, v{FT}')
        A(f's_waitcnt vmcnt({out-2})')
        out -= 2
        A('s_nop 0')
        for bb in range(2):
            r = FRG + (t % FNR)*8 + bb*4
            c = '0' if t == 0 else f'v[{FA+4*bb}:{FA+4*bb+3}]'
            A(f'v_mfma_f32_16x16x32_bf16 v[{FA+4*bb}:{FA+4*bb+3}], v[{r}:{r+3}], v[{b}:{b+3}], {c}')
        if t + FNR < 72:
            gload(t + FNR)
            out += 2
    assert out == 0
    stamp(2)
    A('v_and_b32 v9, 1, v0')
    A(f'v_lshl_add_u32 v9, v{VG}, 1, v9')
    A('v_mul_u32_u24 v11, 9216, v9')
    A('v_bfe_u32 v10, v0, 1, 3')
    A('v_lshl_add_u32 v11, v10, 4, v11')
    A(f's_mul_i32 s9, s78, {64*1152}')
    DR = 104
    def dload(t):
        for cb in range(9):
            r = DR + ((t % 2)*9 + cb)*4
            A(f'buffer_load_dwordx4 v[{r}:{r+3}], v11, s[48:51], s9 offen offset:{cb*128} {cfg.wflags}')
        A('s_add_u32 s9, s9, 1152')
    dload(0)
    GA, UP = 12, 13
    xy_combine(FA, GA, 14)
    xy_combine(FA+4, UP, 14)
    round_bf16(GA); round_bf16(UP)
    A(f'v_mul_f32 v14, v{GA}, v{GA}')
    A(f'v_mul_f32 v14, {f32(0.044715)}, v14')
    A(f'v_fma_f32 v14, v14, v{GA}, v{GA}')
    A(f'v_mul_f32 v14, {f32(-2.0*math.sqrt(2/math.pi)*math.log2(math.e))}, v14')
    A('v_exp_f32 v14, v14')
    A('s_nop 0')
    A('v_add_f32 v14, 1.0, v14')
    A('v_rcp_f32 v14, v14')
    A('s_nop 0')
    A(f'v_mul_f32 v{GA}, v{GA}, v14')
    round_bf16(GA)
    A(f'v_mul_f32 v{GA}, v{GA}, v{UP}')
    A(f'v_cvt_pk_bf16_f32 v{GA}, v{GA}, v{GA}')
    A('v_lshlrev_b32 v14, 1, v0')
    A(f'ds_write_b16 v14, v{GA} offset:{HB}')
    A('v_lshrrev_b32 v14, 3, v0')
    A('v_lshlrev_b32 v14, 4, v14')
    A('s_waitcnt lgkmcnt(0)')
    A(f'ds_read_b128 v[16:19], v14 offset:{HB}')
    A('s_waitcnt lgkmcnt(0)')
    DAc = 64
    for t in range(8):
        b = FB + 4*(t & 1)
        A(f'v_perm_b32 v{FT}, v{16 + t//2}, v{16 + t//2}, s{6 + (t & 1)}')
        for r in range(4):
            A(f'v_and_b32 v{b+r}, v{MK+r}, v{FT}')
        if t + 1 < 8:
            dload(t + 1)
            A('s_waitcnt vmcnt(9)')
        else:
            A('s_waitcnt vmcnt(0)')
        A('s_nop 0')
        for cb in range(9):
            r = DR + ((t % 2)*9 + cb)*4
            c = '0' if t == 0 else f'v[{DAc+4*cb}:{DAc+4*cb+3}]'
            A(f'v_mfma_f32_16x16x32_bf16 v[{DAc+4*cb}:{DAc+4*cb+3}], v[{r}:{r+3}], v[{b}:{b+3}], {c}')
    A('v_lshlrev_b32 v14, 3, v0')
    A('s_lshl_b32 s9, s78, 9')
    A(f's_add_u32 s9, s9, {W_YP}')
    for cb in range(9):
        A(f'v_mov_b32 v{21+2*cb}, s79')
    for cb in range(9):
        xy_combine(DAc+4*cb, 20+2*cb, 15)
        A(f'buffer_store_dwordx2 v[{20+2*cb}:{21+2*cb}], v14, s[52:55], s9 offen sc1')
        A('s_add_u32 s9, s9, 36864')
    LBL('L_end')
    END()
    LBL('L_exit')
    A('s_endpgm')

    L.append('.section .rodata,"a"')
    L.append('.p2align 6')
    L.append(f'.amdhsa_kernel {NAME}_kernel')
    L.append('  .amdhsa_next_free_vgpr 256')
    L.append(f'  .amdhsa_next_free_sgpr {102 if cfg.stamps else 96}')
    L.append('  .amdhsa_accum_offset 256')
    L.append('  .amdhsa_group_segment_fixed_size 0')
    L.append('  .amdhsa_kernarg_size 96')
    L.append('  .amdhsa_user_sgpr_count 2')
    L.append('  .amdhsa_user_sgpr_kernarg_segment_ptr 1')
    L.append('  .amdhsa_system_sgpr_workgroup_id_x 1')
    L.append('  .amdhsa_float_denorm_mode_32 3')
    L.append('.end_amdhsa_kernel')
    return '\n'.join(L) + '\n'

if __name__ == '__main__':
    cfg = Cfg()
    out = f'cdna_kernels/{NAME}.s'
    for a in sys.argv[1:]:
        if a.startswith('out='):
            out = a[4:]
        else:
            k, v = a.split('=', 1)
            old = getattr(cfg, k)
            setattr(cfg, k, type(old)(v) if not isinstance(old, str) else v.replace('_', ' '))
    open(out, 'w').write(gen(cfg))
    print('wrote', out)
```

```python
import sys, struct, math

NAME = 'recurrent_scan__gqa_block_cached__geglu_ffn__decode'

def f32(v):
    return hex(struct.unpack('<I', struct.pack('<f', v))[0])

LOG2E = f32(math.log2(math.e))
SCALE = f32(128 ** -0.5)

XN, QB, HB, GV, TP, OB = 0, 1280, 1792, 1920, 2240, 6592
TPS = 1088
LDS_BYTES = 7168
W_EP, W_CT, W_QX, W_OP, W_ML, W_SP, W_YP, W_ST = 0, 0x1000, 0x10000, 0x50000, 0xD0000, 0xE0000, 0x130000, 0x200000
WS_BYTES = 0x230000
OOB = 0x40000000

class Cfg:
    R = 6
    N = 5
    St = 28
    N0 = 5
    NF = 10
    TH = 1920
    PRE = 5
    kpat = 3
    poll1 = 1
    psleep = 0
    dstamp = 0
    tstamp = 0
    tlb = 0
    ROT = 0
    dmode = 0
    abl = 0
    qsleep = 24
    qpre = 0
    kflags = 'nt'
    vflags = 'nt'
    wflags = 'nt'
    aux_prio = 2
    FN = 8
    spin_max = 1 << 22
    stamps = 0
    xmap = 0

def gen(cfg):
    L = []
    def A(s):
        L.append('    ' + s)
    def LBL(s):
        L.append(s + ':')
    def C(s):
        L.append('    ; ' + s)
    R, N, St = cfg.R, cfg.N, cfg.St
    hdr = open('cdna_kernels/%s.s.ref' % NAME).read().split('\n')
    for line in hdr:
        if line.startswith('; @launch'):
            break
        if line.startswith(';'):
            L.append(line)
    L.append(f'; @launch grid=(256,1,1) block=(384,1,1) lds={LDS_BYTES}')
    L.append('.amdgcn_target "amdgcn-amd-amdhsa--gfx950"')
    L.append('.text')
    L.append(f'.globl {NAME}_kernel')
    L.append('.p2align 8')
    L.append(f'.type {NAME}_kernel,@function')
    LBL(f'{NAME}_kernel')

    def srd(d, lo, nbytes):
        A(f's_mov_b32 s{d}, s{lo}')
        A(f's_and_b32 s{d+1}, s{lo+1}, 0xffff')
        A(f's_mov_b32 s{d+2}, {nbytes}')
        A(f's_mov_b32 s{d+3}, 0x20000')
    DPPM = 'row_mask:0xf bank_mask:0xf'
    def row_allreduce(op, v):
        for pat in ['quad_perm:[1,0,3,2]', 'quad_perm:[2,3,0,1]', 'row_half_mirror', 'row_mirror']:
            A('s_nop 1')
            A(f'{op}_dpp v{v}, v{v}, v{v} {pat} {DPPM}')
    def swap_reduce(sw, op, v, t, E):
        E(f'v_mov_b32 v{t}, v{v}')
        E('s_nop 1')
        E(f'{sw} v{v}, v{t}')
        E('s_nop 1')
        E(f'{op} v{v}, v{v}, v{t}')
    def xrow_allreduce(op, v, t, emit=None):
        E = emit or A
        for sw in ['v_permlane16_swap_b32', 'v_permlane32_swap_b32']:
            swap_reduce(sw, op, v, t, E)
    def round_bf16(v):
        A(f'v_cvt_pk_bf16_f32 v{v}, v{v}, v{v}')
        A(f'v_lshlrev_b32 v{v}, 16, v{v}')
    def xy_combine(acc, dst, t):
        A(f'v_cndmask_b32 v{dst}, v{acc}, v{acc+3}, s[14:15]')
        A(f'v_cndmask_b32 v{t}, v{acc+2}, v{acc+1}, s[14:15]')
        A('s_nop 1')
        A(f'v_add_f32_dpp v{dst}, v{t}, v{dst} row_ror:8 {DPPM}')
    def tag_check(regs, t0, t1, again, done):
        regs = list(regs)
        A(f'v_max_u32 v{t0}, v{regs[0]}, v{regs[1]}')
        A(f'v_min_u32 v{t1}, v{regs[0]}, v{regs[1]}')
        rest = regs[2:]
        while len(rest) >= 2:
            a, b = rest[0], rest[1]; rest = rest[2:]
            A(f'v_max3_u32 v{t0}, v{t0}, v{a}, v{b}')
            A(f'v_min3_u32 v{t1}, v{t1}, v{a}, v{b}')
        if rest:
            A(f'v_max_u32 v{t0}, v{t0}, v{rest[0]}')
            A(f'v_min_u32 v{t1}, v{t1}, v{rest[0]}')
        A(f'v_xor_b32 v{t0}, s79, v{t0}')
        A(f'v_xor_b32 v{t1}, s79, v{t1}')
        A(f'v_or_b32 v{t0}, v{t0}, v{t1}')
        A(f'v_cmp_ne_u32 vcc, 0, v{t0}')
        A('s_sub_u32 s12, s12, 1')
        A('s_cmp_eq_u32 s12, 0')
        A(f's_cbranch_scc1 {done}')
        A(f's_cbranch_vccnz {again}')
        LBL(done)
    def stamp(k, force=False):
        if not cfg.stamps: return
        if cfg.tstamp and k in (3, 4) and not force: return
        A(f's_memrealtime s[{90+2*k}:{91+2*k}]')
    def END():
        if cfg.stamps:
            stamp(5)
            A('s_waitcnt lgkmcnt(0)')
            A('s_mov_b64 exec, 1')
            for k in range(12):
                A(f'v_mov_b32 v{240+k}, s{90+k}')
            A('v_mov_b32 v252, 0')
            for k in range(3):
                A(f'buffer_store_dwordx4 v[{240+4*k}:{243+4*k}], v252, s[52:55], s89 offen offset:{16*k}')
        A('s_endpgm')

    A('s_cmp_ge_u32 s2, 256')
    A('s_cbranch_scc1 L_exit')
    A('s_load_dwordx16 s[16:31], s[0:1], 0')
    A('s_load_dwordx8 s[32:39], s[0:1], 64')
    A('v_lshrrev_b32 v1, 6, v0')
    A('v_and_b32 v0, 63, v0')
    A('v_readfirstlane_b32 s3, v1')
    if cfg.xmap == 0:
        A('s_lshr_b32 s4, s2, 4')
        A('s_and_b32 s5, s2, 15')
    else:
        A('s_and_b32 s4, s2, 15')
        A('s_lshr_b32 s5, s2, 4')
    MK = 2
    VG, VH = 6, 7
    A('v_and_b32 v9, 1, v0')
    A('v_lshlrev_b32 v9, 4, v9')
    A('v_mov_b32 v10, 0xffff')
    A('v_lshlrev_b32 v9, v9, v10')
    A('v_bfe_u32 v10, v0, 1, 2')
    for r in range(4):
        A(f'v_cmp_eq_u32 vcc, {r}, v10')
        A('s_nop 1')
        A(f'v_cndmask_b32 v{MK+r}, 0, v9, vcc')
    A(f'v_lshrrev_b32 v{VG}, 4, v0')
    A(f'v_bfe_u32 v{VH}, v0, 3, 1')
    A(f'v_cmp_eq_u32 s[14:15], 1, v{VH}')
    A('s_mov_b32 s6, 0x01000100')
    A('s_mov_b32 s7, 0x03020302')
    A(f's_mov_b32 s8, {LOG2E}')
    A('s_waitcnt lgkmcnt(0)')
    A(f's_load_dword s80, s[38:39], {W_EP}')
    srd(52, 38, WS_BYTES)
    srd(60, 16, 1152)
    if cfg.stamps:
        A('s_lshl_b32 s89, s2, 3')
        A('s_add_u32 s89, s89, s3')
        A('s_lshl_b32 s89, s89, 6')
        A(f's_add_u32 s89, s89, {W_ST}')
        for k in range(90, 102): A(f's_mov_b32 s{k}, 0')
        stamp(0)
    A('s_cmp_ge_u32 s3, 4')
    A('s_cbranch_scc1 L_aux')

    VKO, VVO = 9, 10
    QF = 12
    DA_, DB_ = 20, 24
    ACC = 28
    VM, VL = 32, 33
    T2 = 34
    S = 36; P = 40; T = 44
    BB = 48
    NB = 6
    BUF = [64 + 32*k for k in range(NB)]
    PRE = cfg.PRE
    assert 3 <= PRE <= NB-1
    SLOT = [BUF[PRE-1], BUF[PRE], BUF[0]]
    WO = BUF[1]
    srd(40, 18, 0x10000000)
    srd(44, 20, 0x10000000)
    if cfg.kpat == 8:
        A('v_bfe_u32 v11, v0, 1, 1')
        A('v_lshlrev_b32 v11, 10, v11')
        A(f'v_bfe_u32 v{VKO}, v0, 2, 2')
        A(f'v_lshl_add_u32 v11, v{VKO}, 8, v11')
        A(f'v_and_b32 v{VKO}, 1, v0')
        A(f'v_lshl_add_u32 v11, v{VKO}, 6, v11')
        A(f'v_lshl_add_u32 v{VKO}, v{VG}, 4, v11')
    else:
        A('v_and_b32 v11, 15, v0')
        A('v_lshlrev_b32 v11, 6, v11')
        A(f'v_lshl_add_u32 v{VKO}, v{VG}, 4, v11')
    A(f'v_lshlrev_b32 v{VVO}, 4, v0')
    A('s_lshl_b32 s76, s4, 24')
    if cfg.ROT:
        A(f's_mul_i32 s83, s4, {cfg.ROT}')
    A('s_lshl_b32 s11, s5, 2')
    A('s_add_u32 s11, s11, s3')
    A('s_mov_b32 s10, 0')
    lab = [0]
    def new_ticket(static_only, drain_label=None):
        lab[0] += 1
        n = lab[0]
        if not static_only:
            A('s_waitcnt lgkmcnt(0)')
            A('s_cmp_ge_u32 s11, 2048')
            A(f's_cbranch_scc1 {drain_label}')
        A('s_mov_b32 s12, s11')
        A('s_add_u32 s10, s10, 1')
        A('s_add_u32 s11, s11, 64')
        if cfg.tstamp and not static_only:
            for kk, cnt in ((3, 16), (4, 26)):
                A(f's_cmp_lg_u32 s10, {cnt}')
                A(f's_cbranch_scc1 L_ts{n}_{kk}')
                stamp(kk, True)
                LBL(f'L_ts{n}_{kk}')
        if not static_only:
            A(f's_cmp_lt_u32 s10, {St}')
            A(f's_cbranch_scc1 L_tk{n}')
            if cfg.dmode == 2:
                A('s_mov_b32 s83, 1')
                A('s_atomic_add s83, s[74:75], 0 glc')
            else:
                A('s_mov_b32 s11, 1')
                A('s_atomic_add s11, s[74:75], 0 glc')
            LBL(f'L_tk{n}')
        tk = 's12'
        if cfg.ROT:
            A('s_add_u32 s84, s12, s83')
            A('s_and_b32 s84, s84, 2047')
            tk = 's84'
        if cfg.dmode == 1:
            A(f's_lshl_b32 s9, {tk}, 13')
        else:
            A(f's_lshr_b32 s9, {tk}, 6')
            A('s_lshl_b32 s9, s9, 7')
            A(f's_and_b32 s13, {tk}, 63')
            A('s_or_b32 s9, s9, s13')
            A('s_lshl_b32 s9, s9, 12')
        A('s_add_u32 s9, s9, s76')
    def begin_issue(u, static_only=False, drain_label=None):
        if u % 2 == 0:
            new_ticket(static_only, drain_label)
        else:
            A(f's_add_u32 s9, s9, {4096 if cfg.dmode == 1 else 64*4096}')
    def one_load(buf, j, cap):
        if cap:
            A(f's_waitcnt vmcnt({cap-1})')
        r = buf + j*4
        if j < 4:
            A(f'buffer_load_dwordx4 v[{r}:{r+3}], v{VKO}, s[40:43], s9 offen offset:{((j&1)*128 + (j>>1)*2048) if cfg.kpat == 8 else j*1024} {cfg.kflags}')
        else:
            A(f'buffer_load_dwordx4 v[{r}:{r+3}], v{VVO}, s[44:47], s9 offen offset:{(j-4)*1024} {cfg.vflags}')
    assert St >= 4
    for u in range(PRE):
        begin_issue(u, static_only=True)
        for j in range(8):
            one_load(BUF[u], j, cfg.N0 if (u*8 + j >= cfg.N0) else 0)
            if u == 0 and j == 4:
                srd(48, 24, 0 if cfg.abl & 8 else 4096*1152)
                srd(56, 34, 1152)
                A('s_lshl_b32 s12, s4, 8')
                A(f's_add_u32 s12, s12, {W_CT}')
                A('s_add_u32 s74, s38, s12')
                A('s_addc_u32 s75, s39, 0')
                for r in range(4):
                    A(f'v_mov_b32 v{ACC+r}, 0')
                A(f'v_mov_b32 v{VM}, 0xff000000')
                A(f'v_mov_b32 v{VL}, 0')
                A('v_and_b32 v8, 1, v0')
                A(f'v_lshl_add_u32 v8, v{VG}, 1, v8')
                A('v_mul_u32_u24 v8, 9216, v8')
                A(f'v_bfe_u32 v{T}, v0, 1, 3')
                A(f'v_lshl_add_u32 v8, v{T}, 4, v8')
                A('s_lshl_b32 s81, s4, 8')
                A('s_lshl_b32 s82, s3, 6')
                A('s_add_u32 s81, s81, s82')
                A('s_mul_i32 s81, s81, 1152')
                A('s_lshl_b32 s82, s5, 7')
                A('s_add_u32 s81, s81, s82')
                A('s_cmp_ge_u32 s5, 9')
                A(f's_cselect_b32 s81, {OOB}, s81')
                A('s_add_u32 s82, s81, 4608')
    def wo_load(t):
        A(f'buffer_load_dwordx4 v[{WO+4*t}:{WO+4*t+3}], v8, s[48:51], s{81 if t < 4 else 82} offen offset:{(t%4)*1152} {cfg.wflags}')
    A(f'v_lshlrev_b32 v11, 8, v{VH}')
    A(f'v_lshl_add_u32 v11, v{VG}, 4, v11')
    A(f'v_and_b32 v{T}, {1 if cfg.kpat == 8 else 3}, v0')
    A(f'v_lshl_add_u32 v11, v{T}, 6, v11')
    A('s_barrier')
    if not cfg.dstamp: stamp(1)
    for j in range(2 if cfg.kpat == 8 else 1):
        A(f'ds_read_b128 v[{QF+4*j}:{QF+4*j+3}], v11 offset:{QB + j*128}')
    A('s_waitcnt lgkmcnt(0)')
    A('s_add_u32 s79, s80, 1')

    def body(kb):
        vb = kb + 16
        out = []
        E = out.append
        if cfg.kpat == 8:
            for half, D in ((0, DA_), (1, DB_)):
                E(f'v_mfma_f32_16x16x32_bf16 v[{D}:{D+3}], v[{kb+8*half}:{kb+8*half+3}], v[{QF}:{QF+3}], 0')
                E(f'v_mfma_f32_16x16x32_bf16 v[{D}:{D+3}], v[{kb+8*half+4}:{kb+8*half+7}], v[{QF+4}:{QF+7}], v[{D}:{D+3}]')
            E('@LOAD')
            E('s_nop 7')
            for half, D in ((0, DA_), (1, DB_)):
                E(f'v_mov_b32_dpp v{T}, v{D+1} quad_perm:[1,1,3,3] {DPPM}')
                E(f'v_mov_b32_dpp v{T+1}, v{D+3} quad_perm:[1,1,3,3] {DPPM}')
                E(f'v_add_f32_dpp v{S+2*half}, v{D}, v{T} quad_perm:[0,0,2,2] {DPPM}')
                E(f'v_add_f32_dpp v{S+2*half+1}, v{D+2}, v{T+1} quad_perm:[0,0,2,2] {DPPM}')
            E('@LOAD')
        else:
            DD = [DA_, DB_, BB, BB+4]
            for j in range(4):
                E(f'v_mfma_f32_16x16x32_bf16 v[{DD[j]}:{DD[j]+3}], v[{kb+4*j}:{kb+4*j+3}], v[{QF}:{QF+3}], 0')
            E('@LOAD')
            E('s_nop 4')
            for j in range(4):
                if j == 2: E('@LOAD')
                E(f'v_mov_b32_dpp v{S+j}, v{DD[j]} quad_perm:[0,0,0,0] {DPPM}')
                for c in range(1, 4):
                    E(f'v_add_f32_dpp v{S+j}, v{DD[j]+c}, v{S+j} quad_perm:[{c},{c},{c},{c}] {DPPM}')
        for rep in range(2):
            E(f'v_cvt_pk_bf16_f32 v{T}, v{S}, v{S+1}')
            E(f'v_cvt_pk_bf16_f32 v{T+1}, v{S+2}, v{S+3}')
            E(f'v_lshlrev_b32 v{S}, 16, v{T}')
            E(f'v_and_b32 v{S+1}, 0xffff0000, v{T}')
            E(f'v_lshlrev_b32 v{S+2}, 16, v{T+1}')
            E(f'v_and_b32 v{S+3}, 0xffff0000, v{T+1}')
            if rep == 0:
                for r in range(4):
                    E(f'v_mul_f32 v{S+r}, {SCALE}, v{S+r}')
        E('@LOAD')
        for r in range(4):
            E(f'v_mul_f32 v{S+r}, s8, v{S+r}')
        for r in range(4):
            E(f'v_floor_f32 v{DA_+r}, v{S+r}')
        E(f'v_max3_f32 v{T}, v{DA_}, v{DA_+1}, v{DA_+2}')
        E(f'v_max3_f32 v{T}, v{T}, v{DA_+3}, v{VM}')
        for r in range(4):
            E(f'v_sub_f32 v{P+r}, v{S+r}, v{DA_+r}')
        xrow_allreduce('v_max_f32', T, T+1, E)
        E('@LOAD')
        for r in range(4):
            E(f'v_exp_f32 v{P+r}, v{P+r}')
        E(f'v_sub_f32 v{T+1}, v{VM}, v{T}')
        E(f'v_cvt_i32_f32 v{T+1}, v{T+1}')
        E(f'v_mov_b32 v{VM}, v{T}')
        for r in range(4):
            E(f'v_sub_f32 v{DA_+r}, v{DA_+r}, v{T}')
        for r in range(4):
            E(f'v_cvt_i32_f32 v{DA_+r}, v{DA_+r}')
        E('@LOAD')
        for r in range(4):
            E(f'v_ldexp_f32 v{P+r}, v{P+r}, v{DA_+r}')
        for r in range(4):
            E(f'v_ldexp_f32 v{ACC+r}, v{ACC+r}, v{T+1}')
        E(f'v_ldexp_f32 v{VL}, v{VL}, v{T+1}')
        E(f'v_add_f32 v{T+2}, v{P}, v{P+1}')
        E(f'v_add_f32 v{T+3}, v{P+2}, v{P+3}')
        E(f'v_add_f32 v{T+2}, v{T+2}, v{T+3}')
        E(f'v_add_f32 v{VL}, v{VL}, v{T+2}')
        E('@LOAD')
        for k in range(4):
            E(f'v_cvt_pk_bf16_f32 v{T2 + (k&1)}, v{P+k}, v{P+k}')
            for r in range(4):
                E(f'v_and_b32 v{BB+4*k+r}, v{MK+r}, v{T2 + (k&1)}')
            if k == 1:
                E('@LOAD')
        E('@VWAIT')
        E('s_nop 1')
        for k in range(4):
            E(f'v_mfma_f32_16x16x32_bf16 v[{ACC}:{ACC+3}], v[{vb+4*k}:{vb+4*k+3}], v[{BB+4*k}:{BB+4*k+3}], v[{ACC}:{ACC+3}]')
        E('@LOAD')
        return out
    def emit_body(kb, loads, vwait=None):
        pt = 0
        for ins in body(kb):
            if ins == '@LOAD':
                for f in loads.get(pt, []): f()
                pt += 1
            elif ins == '@VWAIT':
                if vwait is not None: A(f's_waitcnt vmcnt({vwait})')
            else:
                A(ins)

    begin_issue(PRE, static_only=True)
    nl = 0
    for g in range(PRE-1):
        A(f's_waitcnt vmcnt({min(63, 8*(PRE-1-g) + nl)})')
        want = (8*(g+1) + (PRE-1) - 1)//(PRE-1)
        k = want - nl
        pts = [ (p*8)//k for p in range(k) ] if k else []
        loads = {}
        for p in pts:
            loads.setdefault(p, []).append((lambda jj: (lambda: one_load(BUF[PRE], jj, N)))(nl))
            nl += 1
        emit_body(BUF[g], loads)
    assert nl == 8

    def group(i, fast):
        u = PRE - 1 + i + 2
        cap = cfg.NF if fast else N
        begin_issue(u, drain_label=f'L_drain{i % 3}')
        if u % 2 == 0:
            if not fast:
                A(f's_cmp_ge_u32 s12, {cfg.TH}')
                A(f's_cbranch_scc1 L_fmid{i}')
            else:
                LBL(f'L_fmid{i}')
        A('s_waitcnt vmcnt(8)')
        loads = {p: [(lambda jj: (lambda: one_load(SLOT[(i+2) % 3], jj, cap)))(p)] for p in range(8)}
        emit_body(SLOT[i % 3], loads)
    LBL('L_loop')
    for i in range(6):
        group(i, False)
    A('s_branch L_loop')
    LBL('L_floop')
    for i in range(6):
        group(i, True)
    A('s_branch L_floop')
    for k in range(3):
        LBL(f'L_drain{k}')
        if cfg.dstamp: stamp(1)
        for t in range(8):
            wo_load(t)
        A('s_waitcnt vmcnt(16)')
        emit_body(SLOT[k], {})
        A('s_waitcnt vmcnt(12)')
        emit_body(SLOT[(k+1) % 3], {}, vwait=8)
        if k < 2:
            A('s_branch L_tail')

    LBL('L_tail')
    stamp(2)
    xrow_allreduce('v_add_f32', VL, T)
    A(f's_mul_i32 s10, s3, {TPS}')
    A('v_and_b32 v11, 7, v0')
    A(f'v_lshl_add_u32 v11, v{VG}, 5, v11')
    A(f'v_lshl_add_u32 v11, v{VH}, 7, v11')
    A('v_lshl_add_u32 v11, v11, 2, s10')
    A(f'v_lshl_add_u32 v{T}, v{VH}, 3, s10')
    for r in range(4):
        A(f'ds_write_b32 v11, v{ACC+r} offset:{TP + r*32}')
    A(f'ds_write_b64 v{T}, v[{VM}:{VM+1}] offset:{TP + 1024}')
    A('s_lshl_b32 s10, s3, 8')
    A('v_lshl_add_u32 v11, v0, 2, s10')
    A('s_lshr_b32 s77, s3, 1')
    A('s_lshl_b32 s12, s77, 3')
    A(f'v_mov_b32 v{T}, s12')
    A('s_waitcnt lgkmcnt(0)')
    A('s_barrier')
    stamp(3)
    RA = 132
    for w in range(4):
        A(f'ds_read_b32 v{RA+w}, v11 offset:{TP + w*TPS}')
        A(f'ds_read_b64 v[{RA+4+2*w}:{RA+5+2*w}], v{T} offset:{TP + w*TPS + 1024}')
    A('v_lshlrev_b32 v11, 1, v11')
    M_, Lr, O_ = RA+12, RA+14, RA+16
    A(f'v_mov_b32 v{M_+1}, s79')
    A(f'v_mov_b32 v{Lr+1}, s79')
    A(f'v_mov_b32 v{O_+1}, s79')
    A('s_lshl_b32 s12, s4, 4')
    A('s_add_u32 s12, s12, s5')
    A('s_lshl_b32 s12, s12, 11')
    A(f's_add_u32 s12, s12, {W_OP}')
    A('s_lshl_b32 s13, s4, 1')
    A('s_add_u32 s13, s13, s77')
    A('s_lshl_b32 s13, s13, 8')
    A(f's_add_u32 s13, s13, {W_ML}')
    A('s_waitcnt lgkmcnt(0)')
    A(f'v_max3_f32 v{M_}, v{RA+4}, v{RA+6}, v{RA+8}')
    A(f'v_max_f32 v{M_}, v{M_}, v{RA+10}')
    for w in range(4):
        A(f'v_sub_f32 v{RA+4+2*w}, v{RA+4+2*w}, v{M_}')
        A(f'v_cvt_i32_f32 v{RA+4+2*w}, v{RA+4+2*w}')
    for w in range(4):
        A(f'v_ldexp_f32 v{RA+w}, v{RA+w}, v{RA+4+2*w}')
        A(f'v_ldexp_f32 v{RA+5+2*w}, v{RA+5+2*w}, v{RA+4+2*w}')
    A(f'v_add_f32 v{O_}, v{RA}, v{RA+1}')
    A(f'v_add_f32 v{Lr}, v{RA+5}, v{RA+7}')
    for w in range(2, 4):
        A(f'v_add_f32 v{O_}, v{O_}, v{RA+w}')
        A(f'v_add_f32 v{Lr}, v{Lr}, v{RA+5+2*w}')
    A(f'buffer_store_dwordx2 v[{O_}:{O_+1}], v11, s[52:55], s12 offen sc1')
    A('s_and_b32 s12, s3, 1')
    A('s_cmp_lg_u32 s12, 0')
    A('s_cbranch_scc1 L_noml')
    A('s_lshl_b32 s12, s5, 4')
    A(f'v_mov_b32 v{T}, s12')
    A('s_mov_b64 exec, 1')
    A(f'buffer_store_dwordx2 v[{M_}:{M_+1}], v{T}, s[52:55], s13 offen sc1')
    A(f'buffer_store_dwordx2 v[{Lr}:{Lr+1}], v{T}, s[52:55], s13 offen offset:8 sc1')
    A('s_mov_b64 exec, -1')
    LBL('L_noml')
    A('s_cmp_lt_u32 s5, 9')
    A('s_cbranch_scc1 L_wo')
    A('s_cmp_lg_u32 s5, 13')
    A('s_cbranch_scc1 L_end')
    A('s_cmp_ge_u32 s4, 9')
    A('s_cbranch_scc1 L_end')
    A('s_cmp_lg_u32 s3, 0')
    A('s_cbranch_scc1 L_end')
    A('s_branch L_final')

    LBL('L_wo')
    OPR = 164
    MLR = 160
    A('s_lshl_b32 s68, s4, 15')
    A(f's_add_u32 s68, s68, {W_OP}')
    for k in range(1, 8):
        A(f's_add_u32 s{68+k}, s68, {4096*k}')
    A('v_and_b32 v12, 15, v0')
    A('v_lshlrev_b32 v12, 4, v12')
    A(f's_mov_b32 s12, {cfg.spin_max}')
    if cfg.poll1 == 1:
        LBL('L_pre1')
        if cfg.psleep: A(f's_sleep {cfg.psleep}')
        A(f'buffer_load_dwordx4 v[{MLR}:{MLR+3}], v12, s[52:55], s13 offen sc1')
        A('s_waitcnt vmcnt(0)')
        tag_check([MLR+1, MLR+3], T, T+1, 'L_pre1', 'L_pre1_done')
    LBL('L_poll1')
    A(f'buffer_load_dwordx4 v[{MLR}:{MLR+3}], v12, s[52:55], s13 offen sc1')
    for p in range(16):
        A(f'buffer_load_dwordx2 v[{OPR+2*p}:{OPR+2*p+1}], v11, s[52:55], s{68 + p//2} offen offset:{(p%2)*2048} sc1')
    A('s_waitcnt vmcnt(0)')
    tag_check([MLR+1, MLR+3] + [OPR+2*p+1 for p in range(16)], T, T+1, 'L_poll1', 'L_poll1_done')
    stamp(4)
    A(f'v_mov_b32 v{T}, v{MLR}')
    row_allreduce('v_max_f32', T)
    A(f'v_sub_f32 v{T}, v{MLR}, v{T}')
    A(f'v_cvt_i32_f32 v{T}, v{T}')
    A(f'v_ldexp_f32 v{T+1}, v{MLR+2}, v{T}')
    A(f'v_ldexp_f32 v{T}, 1.0, v{T}')
    row_allreduce('v_add_f32', T+1)
    A(f'v_rcp_f32 v{T+1}, v{T+1}')
    for p in range(16):
        A(f'v_readlane_b32 s{16+p}, v{T}, {p}')
    A('s_nop 1')
    A(f'v_mul_f32 v{T+2}, s16, v{OPR}')
    for p in range(1, 16):
        A(f'v_fmac_f32 v{T+2}, s{16+p}, v{OPR+2*p}')
    A(f'v_mul_f32 v{T+2}, v{T+2}, v{T+1}')
    A(f'v_cvt_pk_bf16_f32 v{T+2}, v{T+2}, v{T+2}')
    A('s_lshl_b32 s12, s3, 7')
    A('v_lshl_add_u32 v12, v0, 1, s12')
    A(f'ds_write_b16 v12, v{T+2} offset:{OB}')
    A('v_lshrrev_b32 v12, 3, v0')
    A('v_lshl_add_u32 v12, v12, 4, s12')
    A('s_waitcnt lgkmcnt(0)')
    A(f'ds_read_b128 v[{S}:{S+3}], v12 offset:{OB}')
    A('s_waitcnt lgkmcnt(0)')
    for t in range(8):
        b = BB + 4*(t % 4)
        A(f'v_perm_b32 v{T}, v{S + t//2}, v{S + t//2}, s{6 + (t & 1)}')
        for r in range(4):
            A(f'v_and_b32 v{b+r}, v{MK+r}, v{T}')
        A('s_nop 1')
        c = '0' if t == 0 else f'v[{ACC}:{ACC+3}]'
        A(f'v_mfma_f32_16x16x32_bf16 v[{ACC}:{ACC+3}], v[{WO+4*t}:{WO+4*t+3}], v[{b}:{b+3}], {c}')
    A('s_lshl_b32 s12, s5, 15')
    A('s_lshl_b32 s13, s4, 2')
    A('s_add_u32 s13, s13, s3')
    A('s_lshl_b32 s13, s13, 9')
    A('s_add_u32 s12, s12, s13')
    A(f's_add_u32 s12, s12, {W_SP}')
    A('v_lshlrev_b32 v12, 3, v0')
    A(f'v_mov_b32 v{T+1}, s79')
    A('s_nop 0')
    xy_combine(ACC, T, T+2)
    A(f'buffer_store_dwordx2 v[{T}:{T+1}], v12, s[52:55], s12 offen sc1')
    END()

    LBL('L_final')
    FR = 128
    A('s_lshl_b32 s68, s4, 15')
    A(f's_add_u32 s68, s68, {W_SP}')
    for k in range(1, 8):
        A(f's_add_u32 s{68+k}, s68, {4096*k}')
    A('v_and_b32 v12, 31, v0')
    A('v_lshlrev_b32 v13, 2, v12')
    A('s_lshl_b32 s13, s4, 7')
    A('buffer_load_dword v14, v13, s[60:63], s13 offen')
    A('v_lshlrev_b32 v12, 3, v12')
    A(f'ds_read_b64 v[16:17], v12 offset:{GV}')
    A(f's_mov_b32 s12, {cfg.spin_max}')
    LBL('L_poll2')
    for k in range(32):
        A(f'buffer_load_dwordx4 v[{FR+4*k}:{FR+4*k+3}], v{VVO}, s[52:55], s{68 + k//4} offen offset:{(k%4)*1024} sc1')
    A('s_waitcnt vmcnt(0) lgkmcnt(0)')
    tag_check([FR+2*k+1 for k in range(64)], T, T+1, 'L_poll2', 'L_poll2_done')
    stamp(4)
    for k in range(1, 32):
        A(f'v_add_f32 v{FR}, v{FR}, v{FR+4*k}')
        A(f'v_add_f32 v{FR+2}, v{FR+2}, v{FR+4*k+2}')
    for r in (0, 2):
        swap_reduce('v_permlane32_swap_b32', 'v_add_f32', FR+r, T, A)
    for i, r in enumerate((0, 2)):
        round_bf16(FR+r)
        A(f'v_mul_f32 v{FR+r}, v{FR+r}, v{16+i}')
        round_bf16(FR+r)
    A('v_lshlrev_b32 v20, 16, v14')
    A('v_and_b32 v21, 0xffff0000, v14')
    A(f'v_add_f32 v20, v20, v{FR}')
    A(f'v_add_f32 v21, v21, v{FR+2}')
    A('v_cvt_pk_bf16_f32 v20, v20, v21')
    A('s_mov_b64 exec, 0xffffffff')
    A('buffer_store_dword v20, v13, s[56:59], s13 offen')
    A('s_cmp_lg_u32 s4, 0')
    A('s_cbranch_scc1 L_end')
    A('v_mov_b32 v21, s79')
    A(f'v_mov_b32 v22, {W_EP}')
    A('s_mov_b64 exec, 1')
    A('buffer_store_dword v21, v22, s[52:55], 0 offen sc1')
    END()

    LBL('L_aux')
    A(f's_setprio {cfg.aux_prio}')
    A('s_cmp_eq_u32 s3, 5')
    A('s_cbranch_scc1 L_qcons')
    A('s_cmp_ge_u32 s5, 8')
    A('s_cbranch_scc1 L_ffn0')

    XR = 12; XF = 18; SU, TT, VV = 28, 29, 30
    def xloads():
        A('v_lshlrev_b32 v9, 4, v0')
        A('v_lshlrev_b32 v10, 2, v0')
        A(f'buffer_load_dwordx4 v[{XR}:{XR+3}], v9, s[60:63], 0 offen')
        A(f'buffer_load_dword v{XR+4}, v10, s[60:63], 0 offen offset:1024')
    def layernorm(after):
        A(f's_waitcnt vmcnt({after})')
        for k in range(5):
            A(f'v_lshlrev_b32 v{XF+2*k}, 16, v{XR+k}')
            A(f'v_and_b32 v{XF+2*k+1}, 0xffff0000, v{XR+k}')
        A(f'v_add_f32 v{SU}, v{XF}, v{XF+1}')
        for k in range(2, 10):
            A(f'v_add_f32 v{SU}, v{SU}, v{XF+k}')
        row_allreduce('v_add_f32', SU)
        xrow_allreduce('v_add_f32', SU, TT)
        A(f'v_mul_f32 v{SU}, {f32(1.0/576)}, v{SU}')
        A(f'v_cmp_gt_u32 vcc, 32, v0')
        A(f'v_sub_f32 v{TT}, v{XF}, v{SU}')
        A(f'v_mul_f32 v{VV}, v{TT}, v{TT}')
        for k in range(1, 8):
            A(f'v_sub_f32 v{TT}, v{XF+k}, v{SU}')
            A(f'v_fmac_f32 v{VV}, v{TT}, v{TT}')
        for k in range(8, 10):
            A(f'v_sub_f32 v{TT}, v{XF+k}, v{SU}')
            A(f'v_cndmask_b32 v{TT}, 0, v{TT}, vcc')
            A(f'v_fmac_f32 v{VV}, v{TT}, v{TT}')
        row_allreduce('v_add_f32', VV)
        xrow_allreduce('v_add_f32', VV, TT)
        A(f'v_mul_f32 v{VV}, {f32(1.0/576)}, v{VV}')
        round_bf16(VV)
        round_bf16(SU)
        A(f'v_add_f32 v{VV}, {f32(1e-5)}, v{VV}')
        round_bf16(VV)
        A(f'v_sqrt_f32 v{VV}, v{VV}')
        A('s_nop 0')
        round_bf16(VV)
        A(f'v_rcp_f32 v{TT}, v{VV}')
        for k in range(10):
            A(f'v_sub_f32 v{XF+k}, v{XF+k}, v{SU}')
            round_bf16(XF+k)
        for k in range(10):
            A(f'v_mul_f32 v31, v{XF+k}, v{TT}')
            A(f'v_fma_f32 v32, -v31, v{VV}, v{XF+k}')
            A(f'v_fma_f32 v{XF+k}, v32, v{TT}, v31')
        for k in range(5):
            A(f'v_cvt_pk_bf16_f32 v{XR+k}, v{XF+2*k}, v{XF+2*k+1}')
        A(f'ds_write_b128 v9, v[{XR}:{XR+3}] offset:{XN}')
        A(f'ds_write_b32 v10, v{XR+4} offset:{XN+1024}')
        A('s_waitcnt lgkmcnt(0)')

    C('q producer: rows 72*slot..+72, 256 columns of this kv head')
    srd(40, 22, 0 if cfg.abl & 4 else 576*8192)
    xloads()
    A('v_and_b32 v11, 1, v0')
    A(f'v_lshl_add_u32 v11, v{VG}, 1, v11')
    A(f's_mov_b32 s10, {9*8192}')
    A('v_mul_lo_u32 v11, v11, s10')
    A('v_bfe_u32 v17, v0, 1, 3')
    A('v_lshl_add_u32 v11, v17, 4, v11')
    A(f's_mul_i32 s9, s5, {72*8192}')
    A('s_lshl_b32 s10, s4, 9')
    A('s_add_u32 s9, s9, s10')
    QR = 100
    for t in range(9):
        for cb in range(4):
            r = QR + (t*4 + cb)*4
            A(f'buffer_load_dwordx4 v[{r}:{r+3}], v11, s[40:43], s9 offen offset:{cb*128} {cfg.wflags}')
        A('s_add_u32 s9, s9, 8192')
    A('s_lshl_b32 s9, s4, 8')
    A(f's_add_u32 s9, s9, {W_CT}')
    A(f'v_mov_b32 v33, {St*64}')
    A('v_mov_b32 v34, 0')
    A('s_cmp_eq_u32 s5, 0')
    A('s_cselect_b64 exec, 1, 0')
    A('s_cbranch_execz L_noct')
    A('buffer_store_dword v33, v34, s[52:55], s9 offen sc1')
    LBL('L_noct')
    A('s_mov_b64 exec, -1')
    stamp(1)
    layernorm(36)
    A('s_mul_i32 s10, s5, 144')
    A('v_lshrrev_b32 v17, 3, v0')
    A('v_mul_u32_u24 v17, 18, v17')
    A('v_add_u32 v17, s10, v17')
    XQ = 18
    for t in range(9):
        A(f'ds_read_u16 v{XQ+t}, v17 offset:{XN + 2*t}')
    A('s_waitcnt lgkmcnt(0)')
    A('s_add_u32 s79, s80, 1')
    stamp(2)
    QA = 40
    AB = 56
    for t in range(9):
        b = AB + 4*(t & 1)
        A(f'v_perm_b32 v9, v{XQ+t}, v{XQ+t}, s6')
        for r in range(4):
            A(f'v_and_b32 v{b+r}, v{MK+r}, v9')
        A(f's_waitcnt vmcnt({36 - 4*(t+1)})')
        A('s_nop 0')
        for cb in range(4):
            r = QR + (t*4 + cb)*4
            c = '0' if t == 0 else f'v[{QA+4*cb}:{QA+4*cb+3}]'
            A(f'v_mfma_f32_16x16x32_bf16 v[{QA+4*cb}:{QA+4*cb+3}], v[{r}:{r+3}], v[{b}:{b+3}], {c}')
    A('s_lshl_b32 s9, s4, 14')
    A('s_lshl_b32 s10, s5, 11')
    A('s_add_u32 s9, s9, s10')
    A(f's_add_u32 s9, s9, {W_QX}')
    A('v_lshlrev_b32 v10, 3, v0')
    for cb in range(4):
        A(f'v_mov_b32 v{21+2*cb}, s79')
    for cb in range(4):
        xy_combine(QA+4*cb, 20+2*cb, 9)
        A(f'buffer_store_dwordx2 v[{20+2*cb}:{21+2*cb}], v10, s[52:55], s9 offen offset:{cb*512} sc1')
    END()

    LBL('L_qcons')
    if cfg.tlb:
        srd(40, 18, 0x10000000)
        srd(44, 20, 0x10000000)
        A('s_lshl_b32 s9, s4, 24')
        npg = (1 << 24) >> cfg.tlb
        A(f'v_lshlrev_b32 v12, {cfg.tlb}, v0')
        if npg < 64:
            A(f's_mov_b64 exec, {hex((1 << npg) - 1)}')
        for k in range(max(1, npg // 64)):
            A(f'buffer_load_dword v{16+2*k}, v12, s[40:43], s9 offen nt')
            A(f'buffer_load_dword v{17+2*k}, v12, s[44:47], s9 offen nt')
            A(f's_add_u32 s9, s9, {64 << cfg.tlb}')
        A('s_mov_b64 exec, -1')
    A('s_lshl_b32 s68, s4, 14')
    A(f's_add_u32 s68, s68, {W_QX}')
    for k in range(1, 4):
        A(f's_add_u32 s{68+k}, s68, {4096*k}')
    A('v_lshlrev_b32 v10, 4, v0')
    A('v_lshlrev_b32 v11, 2, v0')
    A(f's_mov_b32 s12, {cfg.spin_max}')
    A('s_waitcnt lgkmcnt(0)')
    A('s_add_u32 s79, s80, 1')
    sl = cfg.qsleep
    while sl > 0:
        A(f's_sleep {min(sl, 127)}'); sl -= 127
    if cfg.qpre:
        A('v_and_b32 v14, 31, v0')
        A('v_lshlrev_b32 v14, 9, v14')
        LBL('L_prepoll')
        A('s_sleep 2')
        A('buffer_load_dwordx2 v[16:17], v14, s[52:55], s68 offen offset:504 sc1')
        A('s_waitcnt vmcnt(0)')
        A('v_cmp_ne_u32 vcc, s79, v17')
        A('s_sub_u32 s12, s12, 1')
        A('s_cmp_eq_u32 s12, 0')
        A('s_cbranch_scc1 L_pollq')
        A('s_cbranch_vccnz L_prepoll')
    LBL('L_pollq')
    for k in range(16):
        A(f'buffer_load_dwordx4 v[{64+4*k}:{67+4*k}], v10, s[52:55], s{68 + k//4} offen offset:{(k%4)*1024} sc1')
    A('s_waitcnt vmcnt(0)')
    tag_check([64+2*k+1 for k in range(32)], 12, 13, 'L_pollq', 'L_pollq_done')
    stamp(1)
    for rc in range(1, 8):
        for h in range(2):
            for e in (0, 2):
                A(f'v_add_f32 v{64+4*h+e}, v{64+4*h+e}, v{64+4*(2*rc+h)+e}')
    A('v_cvt_pk_bf16_f32 v12, v64, v66')
    A('v_cvt_pk_bf16_f32 v13, v68, v70')
    A(f'ds_write_b32 v11, v12 offset:{QB}')
    A(f'ds_write_b32 v11, v13 offset:{QB+256}')
    A('s_waitcnt lgkmcnt(0)')
    stamp(2)
    A('s_barrier')
    A('s_cmp_lg_u32 s5, 13')
    A('s_cbranch_scc1 L_end')
    A('s_cmp_ge_u32 s4, 9')
    A('s_cbranch_scc1 L_end')
    A('s_mul_i32 s68, s4, 36864')
    A(f's_add_u32 s68, s68, {W_YP}')
    for k in range(1, 9):
        A(f's_add_u32 s{68+k}, s68, {4096*k}')
    A(f's_mov_b32 s12, {cfg.spin_max}')
    YR = 64
    LBL('L_poll3')
    A('s_sleep 127')
    A('s_sleep 127')
    for k in range(36):
        A(f'buffer_load_dwordx4 v[{YR+4*k}:{YR+4*k+3}], v10, s[52:55], s{68 + k//4} offen offset:{(k%4)*1024} sc1')
    A('s_waitcnt vmcnt(0)')
    tag_check([YR+2*k+1 for k in range(72)], 12, 13, 'L_poll3', 'L_poll3_done')
    for k in range(1, 36):
        A(f'v_add_f32 v{YR}, v{YR}, v{YR+4*k}')
        A(f'v_add_f32 v{YR+2}, v{YR+2}, v{YR+4*k+2}')
    for r in (0, 2):
        swap_reduce('v_permlane32_swap_b32', 'v_add_f32', YR+r, 9, A)
    for i, r in enumerate((0, 2)):
        round_bf16(YR+r)
        A(f'v_mul_f32 v9, {f32(-math.log2(math.e))}, v{YR+r}')
        A('v_exp_f32 v9, v9')
        A('s_nop 0')
        A('v_add_f32 v9, 1.0, v9')
        A('v_rcp_f32 v9, v9')
        A('s_nop 0')
        A(f'v_mul_f32 v{12+i}, v{YR+r}, v9')
        round_bf16(12+i)
    A('v_and_b32 v10, 31, v0')
    A('v_lshlrev_b32 v10, 3, v10')
    A(f'ds_write_b64 v10, v[12:13] offset:{GV}')
    A('s_waitcnt lgkmcnt(0)')
    END()

    LBL('L_ffn0')
    A('s_sub_u32 s78, s5, 8')
    A('s_lshl_b32 s78, s78, 4')
    A('s_add_u32 s78, s78, s4')
    A('s_cmp_ge_u32 s78, 72')
    A('s_cbranch_scc1 L_end')
    srd(40, 28, 0 if cfg.abl & 1 else 576*9216)
    srd(44, 30, 0 if cfg.abl & 1 else 576*9216)
    srd(48, 32, 0 if cfg.abl & 2 else 4608*1152)
    xloads()
    FX = 64
    FA = 48
    FB = 56
    FT = 9
    FRG = 104
    FNR = cfg.FN//2
    A('v_and_b32 v17, 1, v0')
    A(f'v_lshl_add_u32 v17, v{VG}, 1, v17')
    A(f's_mov_b32 s10, {72*9216}')
    A('v_mul_lo_u32 v11, v17, s10')
    A('v_bfe_u32 v17, v0, 1, 3')
    A('v_lshl_add_u32 v11, v17, 4, v11')
    A('s_lshl_b32 s9, s78, 7')
    def gload(t):
        for b in range(2):
            r = FRG + (t % FNR)*8 + b*4
            A(f'buffer_load_dwordx4 v[{r}:{r+3}], v11, s[{40+4*b}:{43+4*b}], s9 offen {cfg.wflags}')
        A('s_add_u32 s9, s9, 9216')
    for t in range(FNR):
        gload(t)
    layernorm(2*FNR)
    A('v_lshrrev_b32 v10, 3, v0')
    A('v_mul_u32_u24 v10, 144, v10')
    for k in range(9):
        A(f'ds_read_b128 v[{FX+4*k}:{FX+4*k+3}], v10 offset:{XN + 16*k}')
    A('s_waitcnt lgkmcnt(0)')
    A('s_add_u32 s79, s80, 1')
    out = 2*FNR
    for t in range(72):
        if t == 0:
            A('s_barrier')
            stamp(1)
        b = FB + 4*(t & 1)
        A(f'v_perm_b32 v{FT}, v{FX + t//2}, v{FX + t//2}, s{6 + (t & 1)}')
        for r in range(4):
            A(f'v_and_b32 v{b+r}, v{MK+r}, v{FT}')
        A(f's_waitcnt vmcnt({out-2})')
        out -= 2
        A('s_nop 0')
        for bb in range(2):
            r = FRG + (t % FNR)*8 + bb*4
            c = '0' if t == 0 else f'v[{FA+4*bb}:{FA+4*bb+3}]'
            A(f'v_mfma_f32_16x16x32_bf16 v[{FA+4*bb}:{FA+4*bb+3}], v[{r}:{r+3}], v[{b}:{b+3}], {c}')
        if t + FNR < 72:
            gload(t + FNR)
            out += 2
    assert out == 0
    stamp(2)
    A('v_and_b32 v9, 1, v0')
    A(f'v_lshl_add_u32 v9, v{VG}, 1, v9')
    A('v_mul_u32_u24 v11, 9216, v9')
    A('v_bfe_u32 v10, v0, 1, 3')
    A('v_lshl_add_u32 v11, v10, 4, v11')
    A(f's_mul_i32 s9, s78, {64*1152}')
    DR = 104
    def dload(t):
        for cb in range(9):
            r = DR + ((t % 2)*9 + cb)*4
            A(f'buffer_load_dwordx4 v[{r}:{r+3}], v11, s[48:51], s9 offen offset:{cb*128} {cfg.wflags}')
        A('s_add_u32 s9, s9, 1152')
    dload(0)
    GA, UP = 12, 13
    xy_combine(FA, GA, 14)
    xy_combine(FA+4, UP, 14)
    round_bf16(GA); round_bf16(UP)
    A(f'v_mul_f32 v14, v{GA}, v{GA}')
    A(f'v_mul_f32 v14, {f32(0.044715)}, v14')
    A(f'v_fma_f32 v14, v14, v{GA}, v{GA}')
    A(f'v_mul_f32 v14, {f32(-2.0*math.sqrt(2/math.pi)*math.log2(math.e))}, v14')
    A('v_exp_f32 v14, v14')
    A('s_nop 0')
    A('v_add_f32 v14, 1.0, v14')
    A('v_rcp_f32 v14, v14')
    A('s_nop 0')
    A(f'v_mul_f32 v{GA}, v{GA}, v14')
    round_bf16(GA)
    A(f'v_mul_f32 v{GA}, v{GA}, v{UP}')
    A(f'v_cvt_pk_bf16_f32 v{GA}, v{GA}, v{GA}')
    A('v_lshlrev_b32 v14, 1, v0')
    A(f'ds_write_b16 v14, v{GA} offset:{HB}')
    A('v_lshrrev_b32 v14, 3, v0')
    A('v_lshlrev_b32 v14, 4, v14')
    A('s_waitcnt lgkmcnt(0)')
    A(f'ds_read_b128 v[16:19], v14 offset:{HB}')
    A('s_waitcnt lgkmcnt(0)')
    DAc = 64
    for t in range(8):
        b = FB + 4*(t & 1)
        A(f'v_perm_b32 v{FT}, v{16 + t//2}, v{16 + t//2}, s{6 + (t & 1)}')
        for r in range(4):
            A(f'v_and_b32 v{b+r}, v{MK+r}, v{FT}')
        if t + 1 < 8:
            dload(t + 1)
            A('s_waitcnt vmcnt(9)')
        else:
            A('s_waitcnt vmcnt(0)')
        A('s_nop 0')
        for cb in range(9):
            r = DR + ((t % 2)*9 + cb)*4
            c = '0' if t == 0 else f'v[{DAc+4*cb}:{DAc+4*cb+3}]'
            A(f'v_mfma_f32_16x16x32_bf16 v[{DAc+4*cb}:{DAc+4*cb+3}], v[{r}:{r+3}], v[{b}:{b+3}], {c}')
    A('v_lshlrev_b32 v14, 3, v0')
    A('s_lshl_b32 s9, s78, 9')
    A(f's_add_u32 s9, s9, {W_YP}')
    for cb in range(9):
        A(f'v_mov_b32 v{21+2*cb}, s79')
    for cb in range(9):
        xy_combine(DAc+4*cb, 20+2*cb, 15)
        A(f'buffer_store_dwordx2 v[{20+2*cb}:{21+2*cb}], v14, s[52:55], s9 offen sc1')
        A('s_add_u32 s9, s9, 36864')
    LBL('L_end')
    END()
    LBL('L_exit')
    A('s_endpgm')

    L.append('.section .rodata,"a"')
    L.append('.p2align 6')
    L.append(f'.amdhsa_kernel {NAME}_kernel')
    L.append('  .amdhsa_next_free_vgpr 256')
    L.append(f'  .amdhsa_next_free_sgpr {102 if cfg.stamps else 96}')
    L.append('  .amdhsa_accum_offset 256')
    L.append('  .amdhsa_group_segment_fixed_size 0')
    L.append('  .amdhsa_kernarg_size 96')
    L.append('  .amdhsa_user_sgpr_count 2')
    L.append('  .amdhsa_user_sgpr_kernarg_segment_ptr 1')
    L.append('  .amdhsa_system_sgpr_workgroup_id_x 1')
    L.append('  .amdhsa_float_denorm_mode_32 3')
    L.append('.end_amdhsa_kernel')
    return '\n'.join(L) + '\n'

if __name__ == '__main__':
    cfg = Cfg()
    out = f'cdna_kernels/{NAME}.s'
    for a in sys.argv[1:]:
        if a.startswith('out='):
            out = a[4:]
        else:
            k, v = a.split('=', 1)
            old = getattr(cfg, k)
            setattr(cfg, k, type(old)(v) if not isinstance(old, str) else v.replace('_', ' '))
    open(out, 'w').write(gen(cfg))
    print('wrote', out)
```

```python
import sys, struct, math

NAME = 'recurrent_scan__gqa_block_cached__geglu_ffn__decode'

def f32(v):
    return hex(struct.unpack('<I', struct.pack('<f', v))[0])

LOG2E = f32(math.log2(math.e))
SCALE = f32(128 ** -0.5)

XN, QB, HB, GV, TP, OB = 0, 1280, 1792, 1920, 2240, 6592
TPS = 1088
LDS_BYTES = 7168
W_EP, W_CT, W_QX, W_OP, W_ML, W_SP, W_YP, W_ST = 0, 0x1000, 0x10000, 0x50000, 0xD0000, 0xE0000, 0x130000, 0x200000
WS_BYTES = 0x230000
OOB = 0x40000000

DOC = """
One persistent launch, 256 workgroups (one per CU) of 6 waves.  kv head = wg>>4, slot = wg&15.
 waves 0-3  stream K/V of the head (flash-decoding split over keys, groups of 16 keys, non-temporal loads,
            a capped number of loads in flight).  QK^T and PV both run on v_mfma_f32_16x16x32_bf16 straight from the
            loaded registers: K rows are split in four 32-dim quarters (diagonal of the result summed with DPP), PV uses a
            B operand that holds p on a shifted diagonal, so V needs no transpose.  Online softmax keeps the running max
            as an integer power of two (ceil-free: floor(t) max), rescales are exact ldexp.
            The last ~10% of the keys is handed out through a per-head counter (load balance across CUs).
 wave 4     layernorm + a 72-row slice of xn@wq (slots 0-7) or one 64-column GEGLU unit incl. its w_down rows (slots 8-12).
 wave 5     gathers q for the workgroup; in the 9 finalizer workgroups it also reduces the FFN partials to silu(y).
Hand-offs between workgroups go through d_ws as 8-byte {value, tag} granules written/read with sc1; tag = hash(epoch word),
the epoch word is bumped by the last finalizer, so a launch never accepts words left by an earlier launch.
Tail: per-workgroup (o, m, l) -> 9 workgroups per head combine and multiply by a 256x64 tile of wo -> 9 finalizers
add the 64 partial rows, apply x + s*g and store 64 outputs each.  Intermediate roundings follow the bf16 reference.
"""

class Cfg:
    R = 6
    N = 5
    St = 28
    N0 = 5
    NF = 10
    TH = 1920
    PRE = 5
    kpat = 3
    Sg = 58
    TH1 = 3776
    THF = 3904
    RP = 5
    poll1 = 0
    psleep = 0
    dstamp = 0
    tstamp = 0
    tlb = 0
    ROT = 0
    dmode = 0
    abl = 0
    qsleep = 120
    qpre = 0
    kflags = 'nt'
    vflags = 'nt'
    wflags = 'nt'
    aux_prio = 2
    FN = 4
    spin_max = 1 << 18
    stamps = 0
    xmap = 0

def gen(cfg):
    L = []
    def A(s):
        L.append('    ' + s)
    def LBL(s):
        L.append(s + ':')
    def C(s):
        L.append('    ; ' + s)
    R, N, St = cfg.R, cfg.N, cfg.St
    hdr = open('cdna_kernels/%s.s.ref' % NAME).read().split('\n')
    for line in hdr:
        if line.startswith('; @launch'):
            break
        if line.startswith(';'):
            L.append(line)
    L.append(f'; @launch grid=(256,1,1) block=(384,1,1) lds={LDS_BYTES}')
    L.append('.amdgcn_target "amdgcn-amd-amdhsa--gfx950"')
    for d in DOC.strip().split('\n'):
        L.append('; ' + d)
    L.append('.text')
    L.append(f'.globl {NAME}_kernel')
    L.append('.p2align 8')
    L.append(f'.type {NAME}_kernel,@function')
    LBL(f'{NAME}_kernel')

    def srd(d, lo, nbytes):
        A(f's_mov_b32 s{d}, s{lo}')
        A(f's_and_b32 s{d+1}, s{lo+1}, 0xffff')
        A(f's_mov_b32 s{d+2}, {nbytes}')
        A(f's_mov_b32 s{d+3}, 0x20000')
    DPPM = 'row_mask:0xf bank_mask:0xf'
    def row_allreduce(op, v):
        for pat in ['quad_perm:[1,0,3,2]', 'quad_perm:[2,3,0,1]', 'row_half_mirror', 'row_mirror']:
            A('s_nop 1')
            A(f'{op}_dpp v{v}, v{v}, v{v} {pat} {DPPM}')
    def swap_reduce(sw, op, v, t, E):
        E(f'v_mov_b32 v{t}, v{v}')
        E('s_nop 1')
        E(f'{sw} v{v}, v{t}')
        E('s_nop 1')
        E(f'{op} v{v}, v{v}, v{t}')
    def xrow_allreduce(op, v, t, emit=None):
        E = emit or A
        for sw in ['v_permlane16_swap_b32', 'v_permlane32_swap_b32']:
            swap_reduce(sw, op, v, t, E)
    def round_bf16(v):
        A(f'v_cvt_pk_bf16_f32 v{v}, v{v}, v{v}')
        A(f'v_lshlrev_b32 v{v}, 16, v{v}')
    def xy_combine(acc, dst, t):
        A(f'v_cndmask_b32 v{dst}, v{acc}, v{acc+3}, s[14:15]')
        A(f'v_cndmask_b32 v{t}, v{acc+2}, v{acc+1}, s[14:15]')
        A('s_nop 1')
        A(f'v_add_f32_dpp v{dst}, v{t}, v{dst} row_ror:8 {DPPM}')
    def tag_check(regs, t0, t1, again, done):
        regs = list(regs)
        A(f'v_max_u32 v{t0}, v{regs[0]}, v{regs[1]}')
        A(f'v_min_u32 v{t1}, v{regs[0]}, v{regs[1]}')
        rest = regs[2:]
        while len(rest) >= 2:
            a, b = rest[0], rest[1]; rest = rest[2:]
            A(f'v_max3_u32 v{t0}, v{t0}, v{a}, v{b}')
            A(f'v_min3_u32 v{t1}, v{t1}, v{a}, v{b}')
        if rest:
            A(f'v_max_u32 v{t0}, v{t0}, v{rest[0]}')
            A(f'v_min_u32 v{t1}, v{t1}, v{rest[0]}')
        A(f'v_xor_b32 v{t0}, s79, v{t0}')
        A(f'v_xor_b32 v{t1}, s79, v{t1}')
        A(f'v_or_b32 v{t0}, v{t0}, v{t1}')
        A(f'v_cmp_ne_u32 vcc, 0, v{t0}')
        A('s_sub_u32 s12, s12, 1')
        A('s_cmp_eq_u32 s12, 0')
        A(f's_cbranch_scc1 {done}')
        A(f's_cbranch_vccnz {again}')
        LBL(done)
    def stamp(k, force=False):
        if not cfg.stamps: return
        if cfg.tstamp and k in (3, 4) and not force: return
        A(f's_memrealtime s[{90+2*k}:{91+2*k}]')
    def END():
        if cfg.stamps:
            stamp(5)
            A('s_waitcnt lgkmcnt(0)')
            A('s_mov_b64 exec, 1')
            for k in range(12):
                A(f'v_mov_b32 v{240+k}, s{90+k}')
            A('v_mov_b32 v252, 0')
            for k in range(3):
                A(f'buffer_store_dwordx4 v[{240+4*k}:{243+4*k}], v252, s[52:55], s89 offen offset:{16*k}')
        A('s_endpgm')

    A('s_cmp_ge_u32 s2, 256')
    A('s_cbranch_scc1 L_exit')
    A('s_load_dwordx16 s[16:31], s[0:1], 0')
    A('s_load_dwordx8 s[32:39], s[0:1], 64')
    A('v_lshrrev_b32 v1, 6, v0')
    A('v_and_b32 v0, 63, v0')
    A('v_readfirstlane_b32 s3, v1')
    if cfg.xmap == 0:
        A('s_lshr_b32 s4, s2, 4')
        A('s_and_b32 s5, s2, 15')
    else:
        A('s_and_b32 s4, s2, 15')
        A('s_lshr_b32 s5, s2, 4')
    MK = 2
    VG, VH = 6, 7
    A('v_and_b32 v9, 1, v0')
    A('v_lshlrev_b32 v9, 4, v9')
    A('v_mov_b32 v10, 0xffff')
    A('v_lshlrev_b32 v9, v9, v10')
    A('v_bfe_u32 v10, v0, 1, 2')
    for r in range(4):
        A(f'v_cmp_eq_u32 vcc, {r}, v10')
        A('s_nop 1')
        A(f'v_cndmask_b32 v{MK+r}, 0, v9, vcc')
    A(f'v_lshrrev_b32 v{VG}, 4, v0')
    A(f'v_bfe_u32 v{VH}, v0, 3, 1')
    A(f'v_cmp_eq_u32 s[14:15], 1, v{VH}')
    A('s_mov_b32 s6, 0x01000100')
    A('s_mov_b32 s7, 0x03020302')
    A(f's_mov_b32 s8, {LOG2E}')
    A('s_waitcnt lgkmcnt(0)')
    A(f's_load_dword s80, s[38:39], {W_EP}')
    srd(52, 38, WS_BYTES)
    srd(60, 16, 1152)
    if cfg.stamps:
        A('s_lshl_b32 s89, s2, 3')
        A('s_add_u32 s89, s89, s3')
        A('s_lshl_b32 s89, s89, 6')
        A(f's_add_u32 s89, s89, {W_ST}')
        for k in range(90, 102): A(f's_mov_b32 s{k}, 0')
        stamp(0)
    A('s_cmp_ge_u32 s3, 4')
    A('s_cbranch_scc1 L_aux')

    VKO, VVO = 9, 10
    QF = 12
    DA_, DB_ = 20, 24
    ACC = 28
    VM, VL = 32, 33
    T2 = 34
    S = 36; P = 40; T = 44
    BB = 48
    NB = 6
    BUF = [64 + 32*k for k in range(NB)]
    PRE = cfg.PRE
    assert 3 <= PRE <= NB-1
    SLOT = [BUF[PRE-1], BUF[PRE], BUF[0]]
    WO = BUF[1]
    srd(40, 18, 0x10000000)
    srd(44, 20, 0x10000000)
    if cfg.kpat == 8:
        A('v_bfe_u32 v11, v0, 1, 1')
        A('v_lshlrev_b32 v11, 10, v11')
        A(f'v_bfe_u32 v{VKO}, v0, 2, 2')
        A(f'v_lshl_add_u32 v11, v{VKO}, 8, v11')
        A(f'v_and_b32 v{VKO}, 1, v0')
        A(f'v_lshl_add_u32 v11, v{VKO}, 6, v11')
        A(f'v_lshl_add_u32 v{VKO}, v{VG}, 4, v11')
    else:
        A('v_and_b32 v11, 15, v0')
        A('v_lshlrev_b32 v11, 6, v11')
        A(f'v_lshl_add_u32 v{VKO}, v{VG}, 4, v11')
    A(f'v_lshlrev_b32 v{VVO}, 4, v0')
    Sg = cfg.Sg
    A('s_lshl_b32 s76, s4, 24')
    A('s_lshl_b32 s11, s5, 2')
    A('s_add_u32 s11, s11, s3')
    A('s_mov_b32 s10, 0')
    A('s_mov_b32 s86, 0')
    A('s_mov_b32 s88, 64')
    lab = [0]
    def begin_issue(u, static_only=False, drain_label=None):
        if not static_only:
            A('s_waitcnt lgkmcnt(0)')
            A('s_cmp_ge_u32 s11, 4096')
            A(f's_cbranch_scc1 {drain_label}')
        A('s_mov_b32 s12, s11')
        A('s_lshl_b32 s9, s11, 12')
        A('s_add_u32 s9, s9, s76')
        A('s_add_u32 s10, s10, 1')
        A('s_add_u32 s11, s11, s88')
    def request():
        lab[0] += 1
        n = lab[0]
        A(f's_cmp_lt_u32 s10, {Sg}')
        A(f's_cbranch_scc1 L_tk{n}')
        A('s_cmp_lg_u32 s86, 0')
        A('s_mov_b32 s86, 0')
        A(f's_cbranch_scc1 L_tk{n}')
        A(f's_cmp_lt_u32 s12, {cfg.TH1}')
        A('s_cselect_b32 s86, 1, 0')
        A('s_add_u32 s11, s86, 1')
        A('s_mov_b32 s88, 1')
        A('s_atomic_add s11, s[74:75], 0 glc')
        LBL(f'L_tk{n}')
    def one_load(buf, j, cap):
        if cap:
            A(f's_waitcnt vmcnt({cap-1})')
        r = buf + j*4
        if j < 4:
            A(f'buffer_load_dwordx4 v[{r}:{r+3}], v{VKO}, s[40:43], s9 offen offset:{((j&1)*128 + (j>>1)*2048) if cfg.kpat == 8 else j*1024} {cfg.kflags}')
        else:
            A(f'buffer_load_dwordx4 v[{r}:{r+3}], v{VVO}, s[44:47], s9 offen offset:{(j-4)*1024} {cfg.vflags}')
    for u in range(PRE):
        begin_issue(u, static_only=True)
        for j in range(8):
            one_load(BUF[u], j, cfg.N0 if (u*8 + j >= cfg.N0) else 0)
            if u == 0 and j == 4:
                srd(48, 24, 0 if cfg.abl & 8 else 4096*1152)
                srd(56, 34, 1152)
                A('s_lshl_b32 s12, s4, 8')
                A(f's_add_u32 s12, s12, {W_CT}')
                A('s_add_u32 s74, s38, s12')
                A('s_addc_u32 s75, s39, 0')
                for r in range(4):
                    A(f'v_mov_b32 v{ACC+r}, 0')
                A(f'v_mov_b32 v{VM}, 0xff000000')
                A(f'v_mov_b32 v{VL}, 0')
                A('v_and_b32 v8, 1, v0')
                A(f'v_lshl_add_u32 v8, v{VG}, 1, v8')
                A('v_mul_u32_u24 v8, 9216, v8')
                A(f'v_bfe_u32 v{T}, v0, 1, 3')
                A(f'v_lshl_add_u32 v8, v{T}, 4, v8')
                A('s_lshl_b32 s81, s4, 8')
                A('s_lshl_b32 s82, s3, 6')
                A('s_add_u32 s81, s81, s82')
                A('s_mul_i32 s81, s81, 1152')
                A('s_lshl_b32 s82, s5, 7')
                A('s_add_u32 s81, s81, s82')
                A('s_cmp_ge_u32 s5, 9')
                A(f's_cselect_b32 s81, {OOB}, s81')
                A('s_add_u32 s82, s81, 4608')
    def wo_load(t):
        A(f'buffer_load_dwordx4 v[{WO+4*t}:{WO+4*t+3}], v8, s[48:51], s{81 if t < 4 else 82} offen offset:{(t%4)*1152} {cfg.wflags}')
    A(f'v_lshlrev_b32 v11, 8, v{VH}')
    A(f'v_lshl_add_u32 v11, v{VG}, 4, v11')
    A(f'v_and_b32 v{T}, {1 if cfg.kpat == 8 else 3}, v0')
    A(f'v_lshl_add_u32 v11, v{T}, 6, v11')
    A('s_barrier')
    if not cfg.dstamp: stamp(1)
    for j in range(2 if cfg.kpat == 8 else 1):
        A(f'ds_read_b128 v[{QF+4*j}:{QF+4*j+3}], v11 offset:{QB + j*128}')
    A('s_waitcnt lgkmcnt(0)')
    A('s_mul_i32 s79, s80, 0x9e3779b1')
    A('s_add_u32 s79, s79, 0x7f4a7c15')

    def body(kb):
        vb = kb + 16
        out = []
        E = out.append
        if cfg.kpat == 8:
            for half, D in ((0, DA_), (1, DB_)):
                E(f'v_mfma_f32_16x16x32_bf16 v[{D}:{D+3}], v[{kb+8*half}:{kb+8*half+3}], v[{QF}:{QF+3}], 0')
                E(f'v_mfma_f32_16x16x32_bf16 v[{D}:{D+3}], v[{kb+8*half+4}:{kb+8*half+7}], v[{QF+4}:{QF+7}], v[{D}:{D+3}]')
            E('@LOAD')
            E('s_nop 7')
            for half, D in ((0, DA_), (1, DB_)):
                E(f'v_mov_b32_dpp v{T}, v{D+1} quad_perm:[1,1,3,3] {DPPM}')
                E(f'v_mov_b32_dpp v{T+1}, v{D+3} quad_perm:[1,1,3,3] {DPPM}')
                E(f'v_add_f32_dpp v{S+2*half}, v{D}, v{T} quad_perm:[0,0,2,2] {DPPM}')
                E(f'v_add_f32_dpp v{S+2*half+1}, v{D+2}, v{T+1} quad_perm:[0,0,2,2] {DPPM}')
            E('@LOAD')
        else:
            DD = [DA_, DB_, BB, BB+4]
            for j in range(4):
                E(f'v_mfma_f32_16x16x32_bf16 v[{DD[j]}:{DD[j]+3}], v[{kb+4*j}:{kb+4*j+3}], v[{QF}:{QF+3}], 0')
            E('@LOAD')
            E('s_nop 4')
            for j in range(4):
                if j == 2: E('@LOAD')
                E(f'v_mov_b32_dpp v{S+j}, v{DD[j]} quad_perm:[0,0,0,0] {DPPM}')
                for c in range(1, 4):
                    E(f'v_add_f32_dpp v{S+j}, v{DD[j]+c}, v{S+j} quad_perm:[{c},{c},{c},{c}] {DPPM}')
        for rep in range(2):
            E(f'v_cvt_pk_bf16_f32 v{T}, v{S}, v{S+1}')
            E(f'v_cvt_pk_bf16_f32 v{T+1}, v{S+2}, v{S+3}')
            E(f'v_lshlrev_b32 v{S}, 16, v{T}')
            E(f'v_and_b32 v{S+1}, 0xffff0000, v{T}')
            E(f'v_lshlrev_b32 v{S+2}, 16, v{T+1}')
            E(f'v_and_b32 v{S+3}, 0xffff0000, v{T+1}')
            if rep == 0:
                for r in range(4):
                    E(f'v_mul_f32 v{S+r}, {SCALE}, v{S+r}')
        E('@LOAD')
        for r in range(4):
            E(f'v_mul_f32 v{S+r}, s8, v{S+r}')
        for r in range(4):
            E(f'v_floor_f32 v{DA_+r}, v{S+r}')
        E(f'v_max3_f32 v{T}, v{DA_}, v{DA_+1}, v{DA_+2}')
        E(f'v_max3_f32 v{T}, v{T}, v{DA_+3}, v{VM}')
        for r in range(4):
            E(f'v_sub_f32 v{P+r}, v{S+r}, v{DA_+r}')
        xrow_allreduce('v_max_f32', T, T+1, E)
        E('@LOAD')
        for r in range(4):
            E(f'v_exp_f32 v{P+r}, v{P+r}')
        E(f'v_sub_f32 v{T+1}, v{VM}, v{T}')
        E(f'v_cvt_i32_f32 v{T+1}, v{T+1}')
        E(f'v_mov_b32 v{VM}, v{T}')
        for r in range(4):
            E(f'v_sub_f32 v{DA_+r}, v{DA_+r}, v{T}')
        for r in range(4):
            E(f'v_cvt_i32_f32 v{DA_+r}, v{DA_+r}')
        E('@LOAD')
        for r in range(4):
            E(f'v_ldexp_f32 v{P+r}, v{P+r}, v{DA_+r}')
        for r in range(4):
            E(f'v_ldexp_f32 v{ACC+r}, v{ACC+r}, v{T+1}')
        E(f'v_ldexp_f32 v{VL}, v{VL}, v{T+1}')
        E(f'v_add_f32 v{T+2}, v{P}, v{P+1}')
        E(f'v_add_f32 v{T+3}, v{P+2}, v{P+3}')
        E(f'v_add_f32 v{T+2}, v{T+2}, v{T+3}')
        E(f'v_add_f32 v{VL}, v{VL}, v{T+2}')
        E('@LOAD')
        for k in range(4):
            E(f'v_cvt_pk_bf16_f32 v{T2 + (k&1)}, v{P+k}, v{P+k}')
            for r in range(4):
                E(f'v_and_b32 v{BB+4*k+r}, v{MK+r}, v{T2 + (k&1)}')
            if k == 1:
                E('@LOAD')
        E('@VWAIT')
        E('s_nop 1')
        for k in range(4):
            E(f'v_mfma_f32_16x16x32_bf16 v[{ACC}:{ACC+3}], v[{vb+4*k}:{vb+4*k+3}], v[{BB+4*k}:{BB+4*k+3}], v[{ACC}:{ACC+3}]')
        E('@LOAD')
        return out
    def emit_body(kb, loads, vwait=None):
        pt = 0
        for ins in body(kb):
            if ins == '@LOAD':
                for f in loads.get(pt, []): f()
                pt += 1
            elif ins == '@VWAIT':
                if vwait is not None: A(f's_waitcnt vmcnt({vwait})')
            else:
                A(ins)

    begin_issue(PRE, static_only=True)
    nl = 0
    for g in range(PRE-1):
        A(f's_waitcnt vmcnt({min(63, 8*(PRE-1-g) + nl)})')
        want = (8*(g+1) + (PRE-1) - 1)//(PRE-1)
        k = want - nl
        pts = [ (p*8)//k for p in range(k) ] if k else []
        loads = {}
        for p in pts:
            loads.setdefault(p, []).append((lambda jj: (lambda: one_load(BUF[PRE], jj, N)))(nl))
            nl += 1
        emit_body(BUF[g], loads)
    assert nl == 8

    def group(i, fast):
        cap = cfg.NF if fast else N
        begin_issue(0, drain_label=f'L_drain{i}')
        if not fast:
            A(f's_cmp_ge_u32 s12, {cfg.THF}')
            A(f's_cbranch_scc1 L_fmid{i}')
        else:
            LBL(f'L_fmid{i}')
        A('s_waitcnt vmcnt(8)')
        loads = {p: [(lambda jj: (lambda: one_load(SLOT[(i+2) % 3], jj, cap)))(p)] for p in range(8)}
        loads[cfg.RP if not fast else min(cfg.RP, 1)].append(request)
        emit_body(SLOT[i % 3], loads)
    LBL('L_loop')
    for i in range(3):
        group(i, False)
    A('s_branch L_loop')
    LBL('L_floop')
    for i in range(3):
        group(i, True)
    A('s_branch L_floop')
    for k in range(3):
        LBL(f'L_drain{k}')
        if cfg.dstamp: stamp(1)
        for t in range(8):
            wo_load(t)
        A('s_waitcnt vmcnt(16)')
        emit_body(SLOT[k], {})
        A('s_waitcnt vmcnt(12)')
        emit_body(SLOT[(k+1) % 3], {}, vwait=8)
        if k < 2:
            A('s_branch L_tail')

    LBL('L_tail')
    stamp(2)
    xrow_allreduce('v_add_f32', VL, T)
    A(f's_mul_i32 s10, s3, {TPS}')
    A('v_and_b32 v11, 7, v0')
    A(f'v_lshl_add_u32 v11, v{VG}, 5, v11')
    A(f'v_lshl_add_u32 v11, v{VH}, 7, v11')
    A('v_lshl_add_u32 v11, v11, 2, s10')
    A(f'v_lshl_add_u32 v{T}, v{VH}, 3, s10')
    for r in range(4):
        A(f'ds_write_b32 v11, v{ACC+r} offset:{TP + r*32}')
    A(f'ds_write_b64 v{T}, v[{VM}:{VM+1}] offset:{TP + 1024}')
    A('s_lshl_b32 s10, s3, 8')
    A('v_lshl_add_u32 v11, v0, 2, s10')
    A('s_lshr_b32 s77, s3, 1')
    A('s_lshl_b32 s12, s77, 3')
    A(f'v_mov_b32 v{T}, s12')
    A('s_waitcnt lgkmcnt(0)')
    A('s_barrier')
    stamp(3)
    RA = 132
    for w in range(4):
        A(f'ds_read_b32 v{RA+w}, v11 offset:{TP + w*TPS}')
        A(f'ds_read_b64 v[{RA+4+2*w}:{RA+5+2*w}], v{T} offset:{TP + w*TPS + 1024}')
    A('v_lshlrev_b32 v11, 1, v11')
    M_, Lr, O_ = RA+12, RA+14, RA+16
    A(f'v_mov_b32 v{M_+1}, s79')
    A(f'v_mov_b32 v{Lr+1}, s79')
    A(f'v_mov_b32 v{O_+1}, s79')
    A('s_lshl_b32 s12, s4, 4')
    A('s_add_u32 s12, s12, s5')
    A('s_lshl_b32 s12, s12, 11')
    A(f's_add_u32 s12, s12, {W_OP}')
    A('s_lshl_b32 s13, s4, 1')
    A('s_add_u32 s13, s13, s77')
    A('s_lshl_b32 s13, s13, 8')
    A(f's_add_u32 s13, s13, {W_ML}')
    A('s_waitcnt lgkmcnt(0)')
    A(f'v_max3_f32 v{M_}, v{RA+4}, v{RA+6}, v{RA+8}')
    A(f'v_max_f32 v{M_}, v{M_}, v{RA+10}')
    for w in range(4):
        A(f'v_sub_f32 v{RA+4+2*w}, v{RA+4+2*w}, v{M_}')
        A(f'v_cvt_i32_f32 v{RA+4+2*w}, v{RA+4+2*w}')
    for w in range(4):
        A(f'v_ldexp_f32 v{RA+w}, v{RA+w}, v{RA+4+2*w}')
        A(f'v_ldexp_f32 v{RA+5+2*w}, v{RA+5+2*w}, v{RA+4+2*w}')
    A(f'v_add_f32 v{O_}, v{RA}, v{RA+1}')
    A(f'v_add_f32 v{Lr}, v{RA+5}, v{RA+7}')
    for w in range(2, 4):
        A(f'v_add_f32 v{O_}, v{O_}, v{RA+w}')
        A(f'v_add_f32 v{Lr}, v{Lr}, v{RA+5+2*w}')
    A(f'buffer_store_dwordx2 v[{O_}:{O_+1}], v11, s[52:55], s12 offen sc1')
    A('s_and_b32 s12, s3, 1')
    A('s_cmp_lg_u32 s12, 0')
    A('s_cbranch_scc1 L_noml')
    A('s_lshl_b32 s12, s5, 4')
    A(f'v_mov_b32 v{T}, s12')
    A('s_mov_b64 exec, 1')
    A(f'buffer_store_dwordx2 v[{M_}:{M_+1}], v{T}, s[52:55], s13 offen sc1')
    A(f'buffer_store_dwordx2 v[{Lr}:{Lr+1}], v{T}, s[52:55], s13 offen offset:8 sc1')
    A('s_mov_b64 exec, -1')
    LBL('L_noml')
    A('s_cmp_lt_u32 s5, 9')
    A('s_cbranch_scc1 L_wo')
    A('s_cmp_lg_u32 s5, 13')
    A('s_cbranch_scc1 L_end')
    A('s_cmp_ge_u32 s4, 9')
    A('s_cbranch_scc1 L_end')
    A('s_cmp_lg_u32 s3, 0')
    A('s_cbranch_scc1 L_end')
    A('s_branch L_final')

    LBL('L_wo')
    OPR = 164
    MLR = 160
    A('s_lshl_b32 s68, s4, 15')
    A(f's_add_u32 s68, s68, {W_OP}')
    for k in range(1, 8):
        A(f's_add_u32 s{68+k}, s68, {4096*k}')
    A('v_and_b32 v12, 15, v0')
    A('v_lshlrev_b32 v12, 4, v12')
    A(f's_mov_b32 s12, {cfg.spin_max}')
    if cfg.poll1 == 1:
        LBL('L_pre1')
        if cfg.psleep: A(f's_sleep {cfg.psleep}')
        A(f'buffer_load_dwordx4 v[{MLR}:{MLR+3}], v12, s[52:55], s13 offen sc1')
        A('s_waitcnt vmcnt(0)')
        tag_check([MLR+1, MLR+3], T, T+1, 'L_pre1', 'L_pre1_done')
    LBL('L_poll1')
    A(f'buffer_load_dwordx4 v[{MLR}:{MLR+3}], v12, s[52:55], s13 offen sc1')
    for p in range(16):
        A(f'buffer_load_dwordx2 v[{OPR+2*p}:{OPR+2*p+1}], v11, s[52:55], s{68 + p//2} offen offset:{(p%2)*2048} sc1')
    A('s_waitcnt vmcnt(0)')
    tag_check([MLR+1, MLR+3] + [OPR+2*p+1 for p in range(16)], T, T+1, 'L_poll1', 'L_poll1_done')
    stamp(4)
    A(f'v_mov_b32 v{T}, v{MLR}')
    row_allreduce('v_max_f32', T)
    A(f'v_sub_f32 v{T}, v{MLR}, v{T}')
    A(f'v_cvt_i32_f32 v{T}, v{T}')
    A(f'v_ldexp_f32 v{T+1}, v{MLR+2}, v{T}')
    A(f'v_ldexp_f32 v{T}, 1.0, v{T}')
    row_allreduce('v_add_f32', T+1)
    A(f'v_rcp_f32 v{T+1}, v{T+1}')
    for p in range(16):
        A(f'v_readlane_b32 s{16+p}, v{T}, {p}')
    A('s_nop 1')
    A(f'v_mul_f32 v{T+2}, s16, v{OPR}')
    for p in range(1, 16):
        A(f'v_fmac_f32 v{T+2}, s{16+p}, v{OPR+2*p}')
    A(f'v_mul_f32 v{T+2}, v{T+2}, v{T+1}')
    A(f'v_cvt_pk_bf16_f32 v{T+2}, v{T+2}, v{T+2}')
    A('s_lshl_b32 s12, s3, 7')
    A('v_lshl_add_u32 v12, v0, 1, s12')
    A(f'ds_write_b16 v12, v{T+2} offset:{OB}')
    A('v_lshrrev_b32 v12, 3, v0')
    A('v_lshl_add_u32 v12, v12, 4, s12')
    A('s_waitcnt lgkmcnt(0)')
    A(f'ds_read_b128 v[{S}:{S+3}], v12 offset:{OB}')
    A('s_waitcnt lgkmcnt(0)')
    for t in range(8):
        b = BB + 4*(t % 4)
        A(f'v_perm_b32 v{T}, v{S + t//2}, v{S + t//2}, s{6 + (t & 1)}')
        for r in range(4):
            A(f'v_and_b32 v{b+r}, v{MK+r}, v{T}')
        A('s_nop 1')
        c = '0' if t == 0 else f'v[{ACC}:{ACC+3}]'
        A(f'v_mfma_f32_16x16x32_bf16 v[{ACC}:{ACC+3}], v[{WO+4*t}:{WO+4*t+3}], v[{b}:{b+3}], {c}')
    A('s_lshl_b32 s12, s5, 15')
    A('s_lshl_b32 s13, s4, 2')
    A('s_add_u32 s13, s13, s3')
    A('s_lshl_b32 s13, s13, 9')
    A('s_add_u32 s12, s12, s13')
    A(f's_add_u32 s12, s12, {W_SP}')
    A('v_lshlrev_b32 v12, 3, v0')
    A(f'v_mov_b32 v{T+1}, s79')
    A('s_nop 0')
    xy_combine(ACC, T, T+2)
    A(f'buffer_store_dwordx2 v[{T}:{T+1}], v12, s[52:55], s12 offen sc1')
    END()

    LBL('L_final')
    FR = 128
    A('s_lshl_b32 s68, s4, 15')
    A(f's_add_u32 s68, s68, {W_SP}')
    for k in range(1, 8):
        A(f's_add_u32 s{68+k}, s68, {4096*k}')
    A('v_and_b32 v12, 31, v0')
    A('v_lshlrev_b32 v13, 2, v12')
    A('s_lshl_b32 s13, s4, 7')
    A('buffer_load_dword v14, v13, s[60:63], s13 offen')
    A('v_lshlrev_b32 v12, 3, v12')
    A(f'ds_read_b64 v[16:17], v12 offset:{GV}')
    A(f's_mov_b32 s12, {cfg.spin_max}')
    LBL('L_poll2')
    for k in range(32):
        A(f'buffer_load_dwordx4 v[{FR+4*k}:{FR+4*k+3}], v{VVO}, s[52:55], s{68 + k//4} offen offset:{(k%4)*1024} sc1')
    A('s_waitcnt vmcnt(0) lgkmcnt(0)')
    tag_check([FR+2*k+1 for k in range(64)], T, T+1, 'L_poll2', 'L_poll2_done')
    stamp(4)
    for k in range(1, 32):
        A(f'v_add_f32 v{FR}, v{FR}, v{FR+4*k}')
        A(f'v_add_f32 v{FR+2}, v{FR+2}, v{FR+4*k+2}')
    for r in (0, 2):
        swap_reduce('v_permlane32_swap_b32', 'v_add_f32', FR+r, T, A)
    for i, r in enumerate((0, 2)):
        round_bf16(FR+r)
        A(f'v_mul_f32 v{FR+r}, v{FR+r}, v{16+i}')
        round_bf16(FR+r)
    A('v_lshlrev_b32 v20, 16, v14')
    A('v_and_b32 v21, 0xffff0000, v14')
    A(f'v_add_f32 v20, v20, v{FR}')
    A(f'v_add_f32 v21, v21, v{FR+2}')
    A('v_cvt_pk_bf16_f32 v20, v20, v21')
    A('s_mov_b64 exec, 0xffffffff')
    A('buffer_store_dword v20, v13, s[56:59], s13 offen')
    A('s_cmp_lg_u32 s4, 0')
    A('s_cbranch_scc1 L_end')
    A('s_add_u32 s80, s80, 1')
    A('v_mov_b32 v21, s80')
    A(f'v_mov_b32 v22, {W_EP}')
    A('s_mov_b64 exec, 1')
    A('buffer_store_dword v21, v22, s[52:55], 0 offen sc1')
    END()

    LBL('L_aux')
    A(f's_setprio {cfg.aux_prio}')
    A('s_cmp_eq_u32 s3, 5')
    A('s_cbranch_scc1 L_qcons')
    A('s_cmp_ge_u32 s5, 8')
    A('s_cbranch_scc1 L_ffn0')

    XR = 12; XF = 18; SU, TT, VV = 28, 29, 30
    def xloads():
        A('v_lshlrev_b32 v9, 4, v0')
        A('v_lshlrev_b32 v10, 2, v0')
        A(f'buffer_load_dwordx4 v[{XR}:{XR+3}], v9, s[60:63], 0 offen')
        A(f'buffer_load_dword v{XR+4}, v10, s[60:63], 0 offen offset:1024')
    def layernorm(after):
        A(f's_waitcnt vmcnt({after})')
        for k in range(5):
            A(f'v_lshlrev_b32 v{XF+2*k}, 16, v{XR+k}')
            A(f'v_and_b32 v{XF+2*k+1}, 0xffff0000, v{XR+k}')
        A(f'v_add_f32 v{SU}, v{XF}, v{XF+1}')
        for k in range(2, 10):
            A(f'v_add_f32 v{SU}, v{SU}, v{XF+k}')
        row_allreduce('v_add_f32', SU)
        xrow_allreduce('v_add_f32', SU, TT)
        A(f'v_mul_f32 v{SU}, {f32(1.0/576)}, v{SU}')
        A(f'v_cmp_gt_u32 vcc, 32, v0')
        A(f'v_sub_f32 v{TT}, v{XF}, v{SU}')
        A(f'v_mul_f32 v{VV}, v{TT}, v{TT}')
        for k in range(1, 8):
            A(f'v_sub_f32 v{TT}, v{XF+k}, v{SU}')
            A(f'v_fmac_f32 v{VV}, v{TT}, v{TT}')
        for k in range(8, 10):
            A(f'v_sub_f32 v{TT}, v{XF+k}, v{SU}')
            A(f'v_cndmask_b32 v{TT}, 0, v{TT}, vcc')
            A(f'v_fmac_f32 v{VV}, v{TT}, v{TT}')
        row_allreduce('v_add_f32', VV)
        xrow_allreduce('v_add_f32', VV, TT)
        A(f'v_mul_f32 v{VV}, {f32(1.0/576)}, v{VV}')
        round_bf16(VV)
        round_bf16(SU)
        A(f'v_add_f32 v{VV}, {f32(1e-5)}, v{VV}')
        round_bf16(VV)
        A(f'v_sqrt_f32 v{VV}, v{VV}')
        A('s_nop 0')
        round_bf16(VV)
        A(f'v_rcp_f32 v{TT}, v{VV}')
        for k in range(10):
            A(f'v_sub_f32 v{XF+k}, v{XF+k}, v{SU}')
            round_bf16(XF+k)
        for k in range(10):
            A(f'v_mul_f32 v31, v{XF+k}, v{TT}')
            A(f'v_fma_f32 v32, -v31, v{VV}, v{XF+k}')
            A(f'v_fma_f32 v{XF+k}, v32, v{TT}, v31')
        for k in range(5):
            A(f'v_cvt_pk_bf16_f32 v{XR+k}, v{XF+2*k}, v{XF+2*k+1}')
        A(f'ds_write_b128 v9, v[{XR}:{XR+3}] offset:{XN}')
        A(f'ds_write_b32 v10, v{XR+4} offset:{XN+1024}')
        A('s_waitcnt lgkmcnt(0)')

    C('q producer: rows 72*slot..+72, 256 columns of this kv head')
    srd(40, 22, 0 if cfg.abl & 4 else 576*8192)
    xloads()
    A('v_and_b32 v11, 1, v0')
    A(f'v_lshl_add_u32 v11, v{VG}, 1, v11')
    A(f's_mov_b32 s10, {9*8192}')
    A('v_mul_lo_u32 v11, v11, s10')
    A('v_bfe_u32 v17, v0, 1, 3')
    A('v_lshl_add_u32 v11, v17, 4, v11')
    A(f's_mul_i32 s9, s5, {72*8192}')
    A('s_lshl_b32 s10, s4, 9')
    A('s_add_u32 s9, s9, s10')
    QR = 100
    for t in range(9):
        for cb in range(4):
            r = QR + (t*4 + cb)*4
            A(f'buffer_load_dwordx4 v[{r}:{r+3}], v11, s[40:43], s9 offen offset:{cb*128} {cfg.wflags}')
        A('s_add_u32 s9, s9, 8192')
    A('s_lshl_b32 s9, s4, 8')
    A(f's_add_u32 s9, s9, {W_CT}')
    A(f'v_mov_b32 v33, {cfg.Sg*64}')
    A('v_mov_b32 v34, 0')
    A('s_cmp_eq_u32 s5, 0')
    A('s_cselect_b64 exec, 1, 0')
    A('s_cbranch_execz L_noct')
    A('buffer_store_dword v33, v34, s[52:55], s9 offen sc1')
    LBL('L_noct')
    A('s_mov_b64 exec, -1')
    stamp(1)
    layernorm(36)
    A('s_mul_i32 s10, s5, 144')
    A('v_lshrrev_b32 v17, 3, v0')
    A('v_mul_u32_u24 v17, 18, v17')
    A('v_add_u32 v17, s10, v17')
    XQ = 18
    for t in range(9):
        A(f'ds_read_u16 v{XQ+t}, v17 offset:{XN + 2*t}')
    A('s_waitcnt lgkmcnt(0)')
    A('s_mul_i32 s79, s80, 0x9e3779b1')
    A('s_add_u32 s79, s79, 0x7f4a7c15')
    stamp(2)
    QA = 40
    AB = 56
    for t in range(9):
        b = AB + 4*(t & 1)
        A(f'v_perm_b32 v9, v{XQ+t}, v{XQ+t}, s6')
        for r in range(4):
            A(f'v_and_b32 v{b+r}, v{MK+r}, v9')
        A(f's_waitcnt vmcnt({36 - 4*(t+1)})')
        A('s_nop 0')
        for cb in range(4):
            r = QR + (t*4 + cb)*4
            c = '0' if t == 0 else f'v[{QA+4*cb}:{QA+4*cb+3}]'
            A(f'v_mfma_f32_16x16x32_bf16 v[{QA+4*cb}:{QA+4*cb+3}], v[{r}:{r+3}], v[{b}:{b+3}], {c}')
    A('s_lshl_b32 s9, s4, 14')
    A('s_lshl_b32 s10, s5, 11')
    A('s_add_u32 s9, s9, s10')
    A(f's_add_u32 s9, s9, {W_QX}')
    A('v_lshlrev_b32 v10, 3, v0')
    for cb in range(4):
        A(f'v_mov_b32 v{21+2*cb}, s79')
    for cb in range(4):
        xy_combine(QA+4*cb, 20+2*cb, 9)
        A(f'buffer_store_dwordx2 v[{20+2*cb}:{21+2*cb}], v10, s[52:55], s9 offen offset:{cb*512} sc1')
    END()

    LBL('L_qcons')
    if cfg.tlb:
        srd(40, 18, 0x10000000)
        srd(44, 20, 0x10000000)
        A('s_lshl_b32 s9, s4, 24')
        npg = (1 << 24) >> cfg.tlb
        A(f'v_lshlrev_b32 v12, {cfg.tlb}, v0')
        if npg < 64:
            A(f's_mov_b64 exec, {hex((1 << npg) - 1)}')
        for k in range(max(1, npg // 64)):
            A(f'buffer_load_dword v{16+2*k}, v12, s[40:43], s9 offen nt')
            A(f'buffer_load_dword v{17+2*k}, v12, s[44:47], s9 offen nt')
            A(f's_add_u32 s9, s9, {64 << cfg.tlb}')
        A('s_mov_b64 exec, -1')
    A('s_lshl_b32 s68, s4, 14')
    A(f's_add_u32 s68, s68, {W_QX}')
    for k in range(1, 4):
        A(f's_add_u32 s{68+k}, s68, {4096*k}')
    A('v_lshlrev_b32 v10, 4, v0')
    A('v_lshlrev_b32 v11, 2, v0')
    A(f's_mov_b32 s12, {cfg.spin_max}')
    A('s_waitcnt lgkmcnt(0)')
    A('s_mul_i32 s79, s80, 0x9e3779b1')
    A('s_add_u32 s79, s79, 0x7f4a7c15')
    sl = cfg.qsleep
    while sl > 0:
        A(f's_sleep {min(sl, 127)}'); sl -= 127
    if cfg.qpre:
        A('v_and_b32 v14, 31, v0')
        A('v_lshlrev_b32 v14, 9, v14')
        LBL('L_prepoll')
        A('s_sleep 2')
        A('buffer_load_dwordx2 v[16:17], v14, s[52:55], s68 offen offset:504 sc1')
        A('s_waitcnt vmcnt(0)')
        A('v_cmp_ne_u32 vcc, s79, v17')
        A('s_sub_u32 s12, s12, 1')
        A('s_cmp_eq_u32 s12, 0')
        A('s_cbranch_scc1 L_pollq')
        A('s_cbranch_vccnz L_prepoll')
    LBL('L_pollq')
    for k in range(16):
        A(f'buffer_load_dwordx4 v[{64+4*k}:{67+4*k}], v10, s[52:55], s{68 + k//4} offen offset:{(k%4)*1024} sc1')
    A('s_waitcnt vmcnt(0)')
    tag_check([64+2*k+1 for k in range(32)], 12, 13, 'L_pollq', 'L_pollq_done')
    stamp(1)
    for rc in range(1, 8):
        for h in range(2):
            for e in (0, 2):
                A(f'v_add_f32 v{64+4*h+e}, v{64+4*h+e}, v{64+4*(2*rc+h)+e}')
    A('v_cvt_pk_bf16_f32 v12, v64, v66')
    A('v_cvt_pk_bf16_f32 v13, v68, v70')
    A(f'ds_write_b32 v11, v12 offset:{QB}')
    A(f'ds_write_b32 v11, v13 offset:{QB+256}')
    A('s_waitcnt lgkmcnt(0)')
    stamp(2)
    A('s_barrier')
    A('s_cmp_lg_u32 s5, 13')
    A('s_cbranch_scc1 L_end')
    A('s_cmp_ge_u32 s4, 9')
    A('s_cbranch_scc1 L_end')
    A('s_mul_i32 s68, s4, 36864')
    A(f's_add_u32 s68, s68, {W_YP}')
    for k in range(1, 9):
        A(f's_add_u32 s{68+k}, s68, {4096*k}')
    A(f's_mov_b32 s12, {cfg.spin_max}')
    YR = 64
    LBL('L_poll3')
    A('s_sleep 127')
    A('s_sleep 127')
    for k in range(36):
        A(f'buffer_load_dwordx4 v[{YR+4*k}:{YR+4*k+3}], v10, s[52:55], s{68 + k//4} offen offset:{(k%4)*1024} sc1')
    A('s_waitcnt vmcnt(0)')
    tag_check([YR+2*k+1 for k in range(72)], 12, 13, 'L_poll3', 'L_poll3_done')
    for k in range(1, 36):
        A(f'v_add_f32 v{YR}, v{YR}, v{YR+4*k}')
        A(f'v_add_f32 v{YR+2}, v{YR+2}, v{YR+4*k+2}')
    for r in (0, 2):
        swap_reduce('v_permlane32_swap_b32', 'v_add_f32', YR+r, 9, A)
    for i, r in enumerate((0, 2)):
        round_bf16(YR+r)
        A(f'v_mul_f32 v9, {f32(-math.log2(math.e))}, v{YR+r}')
        A('v_exp_f32 v9, v9')
        A('s_nop 0')
        A('v_add_f32 v9, 1.0, v9')
        A('v_rcp_f32 v9, v9')
        A('s_nop 0')
        A(f'v_mul_f32 v{12+i}, v{YR+r}, v9')
        round_bf16(12+i)
    A('v_and_b32 v10, 31, v0')
    A('v_lshlrev_b32 v10, 3, v10')
    A(f'ds_write_b64 v10, v[12:13] offset:{GV}')
    A('s_waitcnt lgkmcnt(0)')
    END()

    LBL('L_ffn0')
    A('s_sub_u32 s78, s5, 8')
    A('s_lshl_b32 s78, s78, 4')
    A('s_add_u32 s78, s78, s4')
    A('s_cmp_ge_u32 s78, 72')
    A('s_cbranch_scc1 L_end')
    srd(40, 28, 0 if cfg.abl & 1 else 576*9216)
    srd(44, 30, 0 if cfg.abl & 1 else 576*9216)
    srd(48, 32, 0 if cfg.abl & 2 else 4608*1152)
    xloads()
    FX = 64
    FA = 48
    FB = 56
    FT = 9
    FRG = 104
    FNR = cfg.FN//2
    A('v_and_b32 v17, 1, v0')
    A(f'v_lshl_add_u32 v17, v{VG}, 1, v17')
    A(f's_mov_b32 s10, {72*9216}')
    A('v_mul_lo_u32 v11, v17, s10')
    A('v_bfe_u32 v17, v0, 1, 3')
    A('v_lshl_add_u32 v11, v17, 4, v11')
    A('s_lshl_b32 s9, s78, 7')
    def gload(t):
        for b in range(2):
            r = FRG + (t % FNR)*8 + b*4
            A(f'buffer_load_dwordx4 v[{r}:{r+3}], v11, s[{40+4*b}:{43+4*b}], s9 offen {cfg.wflags}')
        A('s_add_u32 s9, s9, 9216')
    for t in range(FNR):
        gload(t)
    layernorm(2*FNR)
    A('v_lshrrev_b32 v10, 3, v0')
    A('v_mul_u32_u24 v10, 144, v10')
    for k in range(9):
        A(f'ds_read_b128 v[{FX+4*k}:{FX+4*k+3}], v10 offset:{XN + 16*k}')
    A('s_waitcnt lgkmcnt(0)')
    A('s_mul_i32 s79, s80, 0x9e3779b1')
    A('s_add_u32 s79, s79, 0x7f4a7c15')
    out = 2*FNR
    for t in range(72):
        if t == 0:
            A('s_barrier')
            stamp(1)
        b = FB + 4*(t & 1)
        A(f'v_perm_b32 v{FT}, v{FX + t//2}, v{FX + t//2}, s{6 + (t & 1)}')
        for r in range(4):
            A(f'v_and_b32 v{b+r}, v{MK+r}, v{FT}')
        A(f's_waitcnt vmcnt({out-2})')
        out -= 2
        A('s_nop 0')
        for bb in range(2):
            r = FRG + (t % FNR)*8 + bb*4
            c = '0' if t == 0 else f'v[{FA+4*bb}:{FA+4*bb+3}]'
            A(f'v_mfma_f32_16x16x32_bf16 v[{FA+4*bb}:{FA+4*bb+3}], v[{r}:{r+3}], v[{b}:{b+3}], {c}')
        if t + FNR < 72:
            gload(t + FNR)
            out += 2
    assert out == 0
    stamp(2)
    A('v_and_b32 v9, 1, v0')
    A(f'v_lshl_add_u32 v9, v{VG}, 1, v9')
    A('v_mul_u32_u24 v11, 9216, v9')
    A('v_bfe_u32 v10, v0, 1, 3')
    A('v_lshl_add_u32 v11, v10, 4, v11')
    A(f's_mul_i32 s9, s78, {64*1152}')
    DR = 104
    def dload(t):
        for cb in range(9):
            r = DR + ((t % 2)*9 + cb)*4
            A(f'buffer_load_dwordx4 v[{r}:{r+3}], v11, s[48:51], s9 offen offset:{cb*128} {cfg.wflags}')
        A('s_add_u32 s9, s9, 1152')
    dload(0)
    GA, UP = 12, 13
    xy_combine(FA, GA, 14)
    xy_combine(FA+4, UP, 14)
    round_bf16(GA); round_bf16(UP)
    A(f'v_mul_f32 v14, v{GA}, v{GA}')
    A(f'v_mul_f32 v14, {f32(0.044715)}, v14')
    A(f'v_fma_f32 v14, v14, v{GA}, v{GA}')
    A(f'v_mul_f32 v14, {f32(-2.0*math.sqrt(2/math.pi)*math.log2(math.e))}, v14')
    A('v_exp_f32 v14, v14')
    A('s_nop 0')
    A('v_add_f32 v14, 1.0, v14')
    A('v_rcp_f32 v14, v14')
    A('s_nop 0')
    A(f'v_mul_f32 v{GA}, v{GA}, v14')
    round_bf16(GA)
    A(f'v_mul_f32 v{GA}, v{GA}, v{UP}')
    A(f'v_cvt_pk_bf16_f32 v{GA}, v{GA}, v{GA}')
    A('v_lshlrev_b32 v14, 1, v0')
    A(f'ds_write_b16 v14, v{GA} offset:{HB}')
    A('v_lshrrev_b32 v14, 3, v0')
    A('v_lshlrev_b32 v14, 4, v14')
    A('s_waitcnt lgkmcnt(0)')
    A(f'ds_read_b128 v[16:19], v14 offset:{HB}')
    A('s_waitcnt lgkmcnt(0)')
    DAc = 64
    for t in range(8):
        b = FB + 4*(t & 1)
        A(f'v_perm_b32 v{FT}, v{16 + t//2}, v{16 + t//2}, s{6 + (t & 1)}')
        for r in range(4):
            A(f'v_and_b32 v{b+r}, v{MK+r}, v{FT}')
        if t + 1 < 8:
            dload(t + 1)
            A('s_waitcnt vmcnt(9)')
        else:
            A('s_waitcnt vmcnt(0)')
        A('s_nop 0')
        for cb in range(9):
            r = DR + ((t % 2)*9 + cb)*4
            c = '0' if t == 0 else f'v[{DAc+4*cb}:{DAc+4*cb+3}]'
            A(f'v_mfma_f32_16x16x32_bf16 v[{DAc+4*cb}:{DAc+4*cb+3}], v[{r}:{r+3}], v[{b}:{b+3}], {c}')
    A('v_lshlrev_b32 v14, 3, v0')
    A('s_lshl_b32 s9, s78, 9')
    A(f's_add_u32 s9, s9, {W_YP}')
    for cb in range(9):
        A(f'v_mov_b32 v{21+2*cb}, s79')
    for cb in range(9):
        xy_combine(DAc+4*cb, 20+2*cb, 15)
        A(f'buffer_store_dwordx2 v[{20+2*cb}:{21+2*cb}], v14, s[52:55], s9 offen sc1')
        A('s_add_u32 s9, s9, 36864')
    LBL('L_end')
    END()
    LBL('L_exit')
    A('s_endpgm')

    L.append('.section .rodata,"a"')
    L.append('.p2align 6')
    L.append(f'.amdhsa_kernel {NAME}_kernel')
    L.append('  .amdhsa_next_free_vgpr 256')
    L.append(f'  .amdhsa_next_free_sgpr {102 if cfg.stamps else 96}')
    L.append('  .amdhsa_accum_offset 256')
    L.append('  .amdhsa_group_segment_fixed_size 0')
    L.append('  .amdhsa_kernarg_size 96')
    L.append('  .amdhsa_user_sgpr_count 2')
    L.append('  .amdhsa_user_sgpr_kernarg_segment_ptr 1')
    L.append('  .amdhsa_system_sgpr_workgroup_id_x 1')
    L.append('  .amdhsa_float_denorm_mode_32 3')
    L.append('.end_amdhsa_kernel')
    return '\n'.join(L) + '\n'

if __name__ == '__main__':
    cfg = Cfg()
    out = f'cdna_kernels/{NAME}.s'
    for a in sys.argv[1:]:
        if a.startswith('out='):
            out = a[4:]
        else:
            k, v = a.split('=', 1)
            old = getattr(cfg, k)
            setattr(cfg, k, type(old)(v) if not isinstance(old, str) else v.replace('_', ' '))
    open(out, 'w').write(gen(cfg))
    print('wrote', out)
```
